```python
import torch

def _softmax(x, axis=-1):
    return torch.softmax(x, dim=axis)
def _gelu(x):
    return torch.nn.functional.gelu(x, approximate="tanh")
def _silu(x):
    return torch.nn.functional.silu(x)
def _sigmoid(x):
    return torch.sigmoid(x)
def _layernorm(x, axis=-1, eps=1e-5):
    m = x.mean(dim=axis, keepdim=True)
    v = x.var(dim=axis, keepdim=True, unbiased=False)
    return (x - m) / torch.sqrt(v + eps)
def _scatter_add(tgt, idx, src, axis=0):
    return tgt.clone().index_add_(axis, idx, src)
def _segment_sum(src, seg, n):
    out = torch.zeros((n,) + src.shape[1:], dtype=src.dtype)
    return out.index_add_(0, seg, src)
def _pad(x, pw):
    flat = tuple(v for pair in reversed(pw) for v in pair)
    return torch.nn.functional.pad(x, flat)

kernel_name = 'sequential_preLN__softmax_full_mha__glu_gated_swiglu__prompt'

def setup_inputs():

    _w = (lambda a: (lambda t: t.to(torch.bfloat16) if t.is_floating_point() else t)(torch.as_tensor(a)))
    def _A_setup():
        B, S, D = 1, 2048, 1024
        return {
            "x": _w((lambda *s: torch.randn(*s, dtype=torch.bfloat16) * 0.05)(B, S, D)),
            "wqkv": _w((lambda *s: torch.randn(*s, dtype=torch.bfloat16) * 0.05)(D, 3 * D)),
            "wo": _w((lambda *s: torch.randn(*s, dtype=torch.bfloat16) * 0.05)(D, D)),
        }
    _A_in = _A_setup()

    def _B_setup():
        B, S, D, F = 1, 2048, 1024, 3584
        return {
            "x": _w((lambda *s: torch.randn(*s, dtype=torch.bfloat16) * 0.05)(B, S, D)),
            "w1": _w((lambda *s: torch.randn(*s, dtype=torch.bfloat16) * 0.8)(D, F) * (2.0 / D) ** 0.5),
            "w3": _w((lambda *s: torch.randn(*s, dtype=torch.bfloat16) * 0.8)(D, F) * (2.0 / D) ** 0.5),
            "w2": _w((lambda *s: torch.randn(*s, dtype=torch.bfloat16) * 0.8)(F, D) * (2.0 / F) ** 0.5),
        }
    _B_in = _B_setup()

    return {
        "A_x": _A_in["x"],
        "A_wqkv": _A_in["wqkv"],
        "A_wo": _A_in["wo"],
        "B_x": _B_in["x"],
        "B_w1": _B_in["w1"],
        "B_w3": _B_in["w3"],
        "B_w2": _B_in["w2"],
    }

def reference(A_x, A_wqkv, A_wo, B_x, B_w1, B_w3, B_w2):
    def _A_ref(x, wqkv, wo):
        B, S, D = x.shape
        H = 32; Dh = D // H
        qkv = (lambda x, *d: x.permute(*d))((x @ wqkv).reshape(B, S, 3, H, Dh), 2, 0, 3, 1, 4)
        q, k, v = qkv[0], qkv[1], qkv[2]
        scale = Dh ** -0.5
        scores = torch.einsum("bhqd,bhkd->bhqk", q, k) * scale
        p = _softmax(scores, axis=-1)
        o = torch.einsum("bhqk,bhkd->bhqd", p, v)
        return (lambda x, *d: x.permute(*d))(o, 0, 2, 1, 3).reshape(B, S, D) @ wo

    def _B_ref(x, w1, w3, w2):
        gate = torch.einsum("bsd,df->bsf", x, w1)
        up = torch.einsum("bsd,df->bsf", x, w3)
        h = _silu(gate) * up
        out = torch.einsum("bsf,fd->bsd", h, w2)
        return out

    x = A_x
    h = x + _A_ref(_layernorm(x, axis=-1), A_wqkv, A_wo)
    h2 = h + _B_ref(_layernorm(h, axis=-1), B_w1, B_w3, B_w2)
    return h2
```

```python
import re

TRANS = ("v_exp_f32", "v_log_f32", "v_rcp_f32", "v_rsq_f32", "v_sqrt_f32", "v_sin_f32", "v_cos_f32")
_REG = re.compile(r"^(-|\|)?(abs\()?([vas])(\d+)\)?\|?$")
_RNG = re.compile(r"^(-|\|)?([vas])\[(\d+):(\d+)\]$")


def regs_of(op):
    op = op.strip()
    m = _REG.match(op)
    if m:
        return [(m.group(3), int(m.group(4)))]
    m = _RNG.match(op)
    if m:
        return [(m.group(2), i) for i in range(int(m.group(3)), int(m.group(4)) + 1)]
    if op in ("vcc", "vcc_lo", "vcc_hi"):
        return [("x", "vcc")]
    if op in ("exec", "exec_lo", "exec_hi"):
        return [("x", "exec")]
    if op == "m0":
        return [("x", "m0")]
    return []


class Ins:
    __slots__ = ("text", "mn", "kind", "rd", "wr", "tag", "wait", "srcc", "srcab", "passes", "dpp", "pos", "wide")

    def __init__(self, text, tag=None):
        self.text = text
        self.tag = tag
        self.wait = None
        self.srcc = []
        self.srcab = []
        self.passes = 0
        self.dpp = False
        self.wide = False
        self.pos = None
        t = text.split(";")[0].strip()
        if t.endswith(":") or t.startswith(".") or t == "":
            self.mn, self.kind, self.rd, self.wr = "", "meta", [], []
            return
        parts = t.split(None, 1)
        mn = parts[0]
        self.mn = mn
        rest = parts[1] if len(parts) > 1 else ""
        ops = [o.strip() for o in re.split(r",(?![^\[]*\])", rest)] if rest else []
        mods = ""
        if ops:
            last = ops[-1].split(None, 1)
            ops[-1] = last[0]
            mods = last[1] if len(last) > 1 else ""
        R = [regs_of(o) for o in ops]
        flat = lambda l: [r for x in l for r in x]
        rd, wr = [], []
        if mn.startswith("v_mfma") or mn.startswith("v_smfmac"):
            self.kind = "mfma"
            wr = R[0]
            self.srcab = R[1] + R[2]
            self.srcc = R[3] if mn.startswith("v_mfma") else R[0]
            rd = self.srcab + self.srcc + (R[3] if mn.startswith("v_smfmac") else [])
            self.passes = 8 if "32x32" in mn else 4
        elif mn.startswith("v_"):
            base = re.sub(r"_(e32|e64|dpp|sdwa)$", "", mn)
            self.kind = "trans" if base in TRANS else "valu"
            self.dpp = bool(re.search(r"quad_perm|row_|wave_", mods))
            if "permlane" in mn and "swap" in mn:
                rd = flat(R); wr = flat(R)
            elif base == "v_swap_b32":
                rd = flat(R); wr = flat(R)
            elif base.startswith("v_cmpx"):
                wr = R[0] + [("x", "exec")]; rd = flat(R[1:])
            elif base in ("v_add_co_u32", "v_sub_co_u32", "v_addc_co_u32", "v_subb_co_u32"):
                wr = R[0] + R[1]; rd = flat(R[2:])
            else:
                wr = R[0]; rd = flat(R[1:])
                if base in ("v_fmac_f32", "v_dot2c_f32_bf16", "v_writelane_b32") or self.dpp or "UNUSED_PRESERVE" in mods:
                    rd = rd + R[0]
        elif mn.startswith("buffer_") or mn.startswith("global_"):
            lds = bool(re.search(r"\blds\b", mods)) or "_lds_" in mn
            if mn in ("buffer_wbl2", "buffer_inv"):
                self.kind = "vst"
            elif "load" in mn and not lds:
                self.kind = "vld"; wr = R[0]; rd = flat(R[1:])
            elif "load" in mn:
                self.kind = "dma"; rd = flat(R) + [("x", "m0")]
            elif "atomic" in mn and re.search(r"\bsc0\b", mods):
                self.kind = "vld"; wr = R[0]; rd = flat(R)
            else:
                self.kind = "vst"; rd = flat(R)
                if "x4" in mn or "x3" in mn:
                    self.wide = True
                    self.srcab = R[0] if mn.startswith("buffer_") else R[1]
        elif mn.startswith("ds_"):
            if "read" in mn or "permute" in mn or "swizzle" in mn:
                self.kind = "dsr"; wr = R[0]; rd = flat(R[1:])
            else:
                self.kind = "dsw"; rd = flat(R)
        elif mn.startswith("s_load") or mn in ("s_memtime", "s_memrealtime"):
            self.kind = "smem"; wr = R[0]; rd = flat(R[1:])
        elif mn == "s_waitcnt":
            self.kind = "wait"
            vm = re.search(r"vmcnt\((\d+)\)", t); lg = re.search(r"lgkmcnt\((\d+)\)", t)
            self.wait = [int(vm.group(1)) if vm else None, int(lg.group(1)) if lg else None]
        elif mn == "s_nop":
            self.kind = "nop"
        elif mn.startswith("s_cmp") or mn.startswith("s_bitcmp"):
            self.kind = "salu"; rd = flat(R)
        elif mn in ("s_barrier", "s_endpgm", "s_setprio", "s_sleep") or mn.startswith("s_cbranch") or mn == "s_branch":
            self.kind = "ctl"
        elif mn.startswith("s_"):
            self.kind = "salu"; wr = R[0]; rd = flat(R[1:])
            if mn in ("s_addk_i32", "s_mulk_i32", "s_bitset1_b32", "s_bitset0_b32"):
                rd = rd + R[0]
            if "saveexec" in mn:
                wr = wr + [("x", "exec")]; rd = rd + [("x", "exec")]
        else:
            raise ValueError("unknown instruction: " + text)
        self.rd, self.wr = rd, wr


class SymWait:
    kind = "symwait"

    def __init__(self, tags):
        self.tags = set(tags)
        self.pos = None
        self.text = "<wait>"


class Kernel:
    def __init__(self, name):
        self.name = name
        self.trace = []
        self.npos = 0
        self.static = []
        self._replay = None
        self._nlab = 0

    def _add(self, ins):
        if self._replay is not None:
            pos, text = self._replay.pop(0)
            assert text == ins.text, f"loop body differs between iterations: {text!r} vs {ins.text!r}"
            ins.pos = pos
        else:
            ins.pos = self.npos
            self.npos += 1
            self.static.append(ins)
        self.trace.append(ins)
        return ins

    def __call__(self, text, tag=None):
        for line in text.strip("\n").split("\n"):
            line = line.strip()
            if line:
                self._add(Ins(line, tag))

    def wait(self, *tags):
        self._add(SymWait(tags))

    def label(self, base):
        self._nlab += 1
        return f"L_{self.name}_{base}_{self._nlab}"

    def loop(self, n, body, sreg, align=True):
        if n == 1:
            body(0)
            return
        assert self._replay is None
        lab = self.label("loop")
        self(f"s_mov_b32 {sreg}, {n}")
        if align:
            self(".p2align 5")
        self(f"{lab}:")
        start = len(self.static)

        def one(it):
            body(it)
            self(f"s_sub_u32 {sreg}, {sreg}, 1")
            self(f"s_cmp_lg_u32 {sreg}, 0")
            self(f"s_cbranch_scc1 {lab}")
        one(0)
        skel = [(i.pos, i.text) for i in self.static[start:]]
        for it in range(1, n):
            self._replay = list(skel)
            one(it)
            assert not self._replay, "loop body shorter than first iteration"
            self._replay = None

    def _waits(self):
        need = {}
        for _pass in range(4):
            changed = False
            vm, lg = [], []

            def apply(w):
                if w[0] is not None:
                    del vm[: max(0, len(vm) - w[0])]
                if w[1] is not None:
                    if w[1] == 0:
                        del lg[:]
                    elif not any(o.kind == "smem" for o in lg):
                        del lg[: max(0, len(lg) - w[1])]

            def require(pos, which, cnt):
                nonlocal changed
                cnt = min(cnt, 63 if which == 0 else 15)
                w = need.setdefault(pos, [None, None])
                if w[which] is None or cnt < w[which]:
                    w[which] = cnt
                    changed = True

            def cover(q, which, pred, pos):
                idx = [i for i, o in enumerate(q) if pred(o)]
                if idx:
                    cnt = len(q) - 1 - idx[-1]
                    if which == 1 and any(o.kind == "smem" for o in q):
                        cnt = 0
                    require(pos, which, cnt)

            for ins in self.trace:
                if ins.kind == "meta":
                    continue
                if ins.kind == "wait":
                    apply(ins.wait)
                    continue
                if ins.pos in need:
                    apply(need[ins.pos])
                if ins.kind == "symwait":
                    cover(vm, 0, lambda o: o.tag in ins.tags, ins.pos)
                    cover(lg, 1, lambda o: o.tag in ins.tags, ins.pos)
                else:
                    touched = set(ins.rd) | set(ins.wr)
                    t_vm = set(ins.rd) if ins.kind == "vld" else touched
                    t_lg = set(ins.rd) if ins.kind == "dsr" else touched
                    cover(vm, 0, lambda o: t_vm & set(o.wr), ins.pos)
                    cover(lg, 1, lambda o: t_lg & set(o.wr), ins.pos)
                if ins.pos in need:
                    apply(need[ins.pos])
                if ins.kind in ("vld", "vst", "dma"):
                    vm.append(ins)
                elif ins.kind in ("dsr", "dsw", "smem"):
                    lg.append(ins)
            if not changed:
                break
        return need

    @staticmethod
    def _hazard(p, c):
        n = 0
        pw = set(p.wr)
        crd, cwr = set(c.rd), set(c.wr)
        isv = lambda k: k in ("valu", "trans")
        vec = lambda s: {r for r in s if r[0] in "va"}
        sc = lambda s: {r for r in s if r[0] == "s" or r == ("x", "vcc")}
        if isv(p.kind):
            if c.kind == "mfma" and vec(pw) & crd:
                n = max(n, 2)
            if isv(c.kind):
                if (c.dpp or "permlane" in c.mn) and vec(pw) & crd:
                    n = max(n, 2)
                if c.mn.startswith(("v_readlane", "v_readfirstlane")) and vec(pw) & crd:
                    n = max(n, 1)
                if p.kind == "trans" and c.kind != "trans" and vec(pw) & crd:
                    n = max(n, 1)
                if sc(pw) & crd or (("x", "vcc") in pw and c.mn.startswith("v_cndmask")):
                    n = max(n, 4 if c.mn.startswith(("v_readlane", "v_writelane")) else 2)
                if "sdwa" in p.mn and vec(pw) & (crd | cwr):
                    n = max(n, 1)
                if ("x", "exec") in pw:
                    n = max(n, 5)
            if c.kind == "mfma" and ("x", "exec") in pw:
                n = max(n, 4)
            if c.kind in ("vld", "vst", "dma") and sc(pw) & crd:
                n = max(n, 5)
            if c.kind in ("salu", "ctl") and (sc(pw) & crd or (("x", "vcc") in pw and "vcc" in c.mn)):
                n = max(n, 2)
        if p.kind == "salu" and ("x", "m0") in pw and c.kind == "dma":
            n = max(n, 1)
        if p.kind == "mfma":
            big = p.passes == 8
            if c.kind == "mfma":
                if pw & set(c.srcab):
                    n = max(n, 12 if big else 8)
                if pw & set(c.srcc):
                    if not (p.wr == c.srcc and p.passes == c.passes):
                        n = max(n, 10 if big else 6)
                elif pw & cwr:
                    n = max(n, 10 if big else 6)
            elif c.kind in ("valu", "trans", "vld", "vst", "dma", "dsr", "dsw"):
                if pw & (crd | cwr):
                    n = max(n, 12 if big else 8)
                if isv(c.kind) and set(p.srcc) & cwr:
                    n = max(n, 7 if big else 3)
        if p.kind == "vst" and p.wide and set(p.srcab) & cwr:
            n = max(n, 2)
        return n

    def _nops(self, need):
        pad = {}
        for _pass in range(3):
            changed = False
            hist = []
            for ins in self.trace:
                if ins.kind == "meta":
                    continue
                w = need.get(ins.pos)
                haswait = w is not None and (w[0] is not None or w[1] is not None)
                if ins.kind == "symwait":
                    if haswait:
                        hist.append((None, 1))
                    continue
                if haswait:
                    hist.append((None, 1))
                req = 0
                d = 0
                for p, st in reversed(hist):
                    if p is not None:
                        h = self._hazard(p, ins)
                        req = max(req, h - d)
                    d += st
                    if d >= 20:
                        break
                if req > pad.get(ins.pos, 0):
                    pad[ins.pos] = req
                    changed = True
                if pad.get(ins.pos, 0):
                    hist.append((None, pad[ins.pos]))
                st = 1
                if ins.kind == "nop":
                    st = int(ins.text.split()[1]) + 1
                hist.append((ins, st))
                if len(hist) > 64:
                    del hist[:32]
            if not changed:
                break
        return pad

    def text(self):
        need = self._waits()
        pad = self._nops(need)
        out = []
        self.n_nops = 0
        for ins in self.static:
            w = need.get(ins.pos)
            if w is not None and (w[0] is not None or w[1] is not None):
                s = "s_waitcnt"
                if w[0] is not None:
                    s += f" vmcnt({w[0]})"
                if w[1] is not None:
                    s += f" lgkmcnt({w[1]})"
                out.append("    " + s)
            if ins.kind == "symwait":
                continue
            p = pad.get(ins.pos, 0)
            if p:
                out.append(f"    s_nop {p - 1}")
                self.n_nops += 1
            out.append(ins.text if ins.kind == "meta" else "    " + ins.text)
        return "\n".join(out) + "\n"


def descriptor(name, vgpr, accum, sgpr=102):
    return f""".amdhsa_kernel {name}
  .amdhsa_next_free_vgpr {vgpr}
  .amdhsa_next_free_sgpr {sgpr}
  .amdhsa_accum_offset {accum}
  .amdhsa_group_segment_fixed_size 0
  .amdhsa_kernarg_size 80
  .amdhsa_user_sgpr_count 2
  .amdhsa_user_sgpr_kernarg_segment_ptr 1
  .amdhsa_system_sgpr_workgroup_id_x 1
  .amdhsa_float_denorm_mode_32 3
.end_amdhsa_kernel
"""
```

```python
import sys
from asmlib import Kernel, descriptor

NAME = "sequential_preLN__softmax_full_mha__glu_gated_swiglu__prompt"
WS_XN, WS_Q, WS_KV, WS_O, WS_HC, WS_ACT = 0x0, 0x400000, 0x800000, 0x1000000, 0x1400000, 0x1800000
WS_MEANX, WS_WBAR, WS_MEANH, WS_VARP = 0x2600000, 0x2602000, 0x2604000, 0x2608000
WS_STAMP = 0x2700000
WS_SIZE = 0x2800000
OOB = 0x40000000
LOG2E = 1.4426950408889634
STAMPS = False


def f32(x):
    import struct
    return "0x%08x" % struct.unpack("<I", struct.pack("<f", x))[0]


def vr(b, n=1, c="v"):
    return f"{c}{b}" if n == 1 else f"{c}[{b}:{b + n - 1}]"


def ar(b, n=1):
    return vr(b, n, "a")


S_WS = "s[4:7]"
S_A = "s[8:11]"
S_W = "s[12:15]"
S_WAVE = "s16"
S_XCD, S_J = "s17", "s18"
S_KARG = 36


def srd(k, dst, slot, size):
    k(f"""s_mov_b32 s{dst}, s{S_KARG + 2 * slot}
    s_mov_b32 s{dst + 1}, s{S_KARG + 2 * slot + 1}
    s_mov_b32 s{dst + 2}, {hex(size)}
    s_mov_b32 s{dst + 3}, 0x20000""")


def stamp(k, idx):
    if STAMPS:
        k(f"s_memrealtime s[{60 + 2 * idx}:{61 + 2 * idx}]")


def head(k, kid):
    k(f""".globl {k.name}
.p2align 8
.type {k.name},@function
{k.name}:""")
    k.end = k.label("end")
    k.kid = kid
    k(f"""s_cmp_ge_u32 s2, 256
    s_cbranch_scc1 {k.end}""")
    stamp(k, 0)
    k(f"""s_load_dwordx16 s[{S_KARG}:{S_KARG + 15}], s[0:1], 0
    s_load_dwordx4 s[{S_KARG + 16}:{S_KARG + 19}], s[0:1], 64
    v_lshrrev_b32 v1, 6, v0
    v_and_b32 v0, 63, v0
    v_readfirstlane_b32 {S_WAVE}, v1
    s_and_b32 {S_XCD}, s2, 7
    s_lshr_b32 {S_J}, s2, 3""")
    srd(k, 4, 9, WS_SIZE)


def tail(k, nst=4):
    if STAMPS:
        k("s_waitcnt vmcnt(0)")
        stamp(k, nst - 1)
        k("s_waitcnt lgkmcnt(0)")
        k(f"""s_lshl_b32 s3, s2, 2
        s_add_u32 s3, s3, {S_WAVE}
        s_lshl_b32 s3, s3, 5
        s_add_u32 s3, s3, {WS_STAMP + k.kid * 32768}
        v_mov_b32 v1, 0""")
        for i in range(nst):
            k(f"""v_mov_b32 v2, s{60 + 2 * i}
            buffer_store_dword v2, v1, {S_WS}, s3 offen offset:{4 * i}""")
    k(f"""{k.end}:
    s_endpgm""")


def dpp_sum16(k, v):
    for m in ("quad_perm:[1,0,3,2]", "quad_perm:[2,3,0,1]", "row_half_mirror", "row_mirror"):
        k(f"v_add_f32_dpp {v}, {v}, {v} {m} row_mask:0xf bank_mask:0xf")


def swap_sum(k, v, t, which, op="v_add_f32"):
    k(f"""v_mov_b32 {t}, {v}
    v_permlane{which}_swap_b32 {v}, {t}
    {op} {v}, {v}, {t}""")


def k_prep():
    k = Kernel("prep_kernel")
    head(k, 0)
    srd(k, 8, 0, 2048 * 2048)
    srd(k, 12, 2, 1024 * 2048)
    k(f"""s_lshl_b32 s19, s2, 3
    s_lshl_b32 s20, {S_WAVE}, 1
    s_add_u32 s19, s19, s20
    v_lshrrev_b32 v2, 5, v0
    v_add_u32 v3, s19, v2
    v_and_b32 v4, 31, v0
    v_lshlrev_b32 v5, 11, v3
    v_lshl_add_u32 v5, v4, 4, v5
    s_lshl_b32 s21, s2, 2
    s_add_u32 s21, s21, {S_WAVE}
    s_lshl_b32 s22, s21, 11
    v_lshlrev_b32 v6, 4, v0""")
    for i in range(4):
        k(f"buffer_load_dwordx4 {vr(16 + 4 * i, 4)}, v5, {S_A}, 0 offen offset:{512 * i}")
    for i in range(2):
        k(f"buffer_load_dwordx4 {vr(64 + 4 * i, 4)}, v6, {S_W}, s22 offen offset:{1024 * i}")
    k(f"""v_add_u32 v7, s20, v2
    v_and_b32 v8, 7, v0
    v_xor_b32 v7, v7, v8
    v_lshlrev_b32 v7, 4, v7
    v_lshl_add_u32 v7, v4, 7, v7""")
    k(f"""s_lshl_b32 s23, {S_WAVE}, 3
    v_lshrrev_b32 v9, 3, v0
    v_xor_b32 v10, v9, v8
    v_add_u32 v9, s23, v9
    v_lshlrev_b32 v10, 4, v10
    v_lshl_add_u32 v10, v9, 7, v10
    v_lshlrev_b32 v11, 4, v8
    v_lshl_add_u32 v11, v9, 8, v11
    s_lshr_b32 s24, s2, 1
    s_lshl_b32 s24, s24, 15
    s_and_b32 s25, s2, 1
    s_lshl_b32 s25, s25, 7
    s_add_u32 s24, s24, s25
    s_mov_b32 s26, 0xffff0000""")
    for i in range(16):
        k(f"""v_lshlrev_b32 v{32 + 2 * i}, 16, v{16 + i}
        v_and_b32 v{33 + 2 * i}, s26, v{16 + i}""")
    k("v_add_f32 v12, v32, v33")
    k("v_add_f32 v13, v34, v35")
    for i in range(2, 16):
        k(f"v_add_f32 v12, v12, v{32 + 2 * i}")
        k(f"v_add_f32 v13, v13, v{33 + 2 * i}")
    k("v_add_f32 v12, v12, v13")
    dpp_sum16(k, "v12")
    swap_sum(k, "v12", "v13", 16)
    k(f"v_mul_f32 v12, {f32(1 / 1024)}, v12")
    for i in range(32):
        k(f"v_sub_f32 v{32 + i}, v{32 + i}, v12")
    k("v_mul_f32 v13, v32, v32")
    k("v_mul_f32 v14, v33, v33")
    for i in range(1, 16):
        k(f"v_fmac_f32 v13, v{32 + 2 * i}, v{32 + 2 * i}")
        k(f"v_fmac_f32 v14, v{33 + 2 * i}, v{33 + 2 * i}")
    k("v_add_f32 v13, v13, v14")
    dpp_sum16(k, "v13")
    swap_sum(k, "v13", "v14", 16)
    k(f"""v_mov_b32 v14, {f32(1e-5)}
    v_fmac_f32 v14, {f32(1 / 1024)}, v13
    v_rsq_f32 v14, v14""")
    for i in range(32):
        k(f"v_mul_f32 v{32 + i}, v{32 + i}, v14")
    for i in range(16):
        k(f"v_cvt_pk_bf16_f32 v{16 + i}, v{32 + 2 * i}, v{33 + 2 * i}")
    for i in range(4):
        k(f"ds_write_b128 v7, {vr(16 + 4 * i, 4)} offset:{4096 * i}", tag="t")
    k(f"""v_lshlrev_b32 v3, 2, v3
    s_mov_b32 s27, {WS_MEANX}
    s_mov_b32 exec_lo, 1
    s_mov_b32 exec_hi, 1
    buffer_store_dword v12, v3, {S_WS}, s27 offen
    s_mov_b64 exec, -1""")
    k.wait("t")
    k("s_barrier")
    for i in range(4):
        k(f"ds_read_b128 {vr(16 + 4 * i, 4)}, v10 offset:{4096 * i}")
    for i in range(4):
        k(f"buffer_store_dwordx4 {vr(16 + 4 * i, 4)}, v11, {S_WS}, s24 offen")
        if i < 3:
            k("s_add_u32 s24, s24, 8192")
    for i in range(8):
        k(f"""v_lshlrev_b32 v{32 + 2 * i}, 16, v{64 + i}
        v_and_b32 v{33 + 2 * i}, s26, v{64 + i}""")
    for i in range(1, 16):
        k(f"v_add_f32 v32, v32, v{32 + i}")
    dpp_sum16(k, "v32")
    swap_sum(k, "v32", "v33", 16)
    swap_sum(k, "v32", "v33", 32)
    k(f"""v_mul_f32 v32, {f32(1 / 1024)}, v32
    v_cvt_pk_bf16_f32 v33, v32, v32
    v_and_b32 v34, s26, v33
    v_sub_f32 v34, v32, v34
    v_cvt_pk_bf16_f32 v34, v34, v34
    s_lshl_b32 s21, s21, 1
    s_add_u32 s21, s21, {WS_WBAR}
    v_mov_b32 v35, 0
    s_mov_b64 exec, 1
    buffer_store_short v33, v35, {S_WS}, s21 offen
    buffer_store_short v34, v35, {S_WS}, s21 offen offset:2048
    s_mov_b64 exec, -1""")
    tail(k)
    return k, 72, 72, 16384


class G:
    pass


S_WSLOT, S_WSOFF, S_XK, S_XSOFF, S_RD, S_DELTA, S_CNT, S_WEND = "s20", "s21", "s22", "s23", "s24", "s25", "s26", "s27"


def lane_terms(k, vi4, vg, vf):
    k(f"""v_bfe_u32 {vi4}, v0, 2, 2
    v_lshrrev_b32 {vg}, 4, v0
    v_and_b32 {vf}, 2, {vi4}
    v_and_or_b32 {vf}, {vg}, 1, {vf}""")


def gemm_w_stage(p, st):
    out = []
    for m0off, lst in p.dma:
        out.append((f"s_add_u32 m0, {S_WSLOT}, {m0off}" if m0off else f"s_mov_b32 m0, {S_WSLOT}", None))
        for (vo, sr, imm) in lst:
            out.append((f"buffer_load_dwordx4 {vo}, {sr}, {S_WSOFF} offen offset:{imm} lds", ("W", st)))
    out.append((f"s_add_u32 {S_WSOFF}, {S_WSOFF}, {p.wstep}", None))
    out.append((f"s_add_u32 {S_WSLOT}, {S_WSLOT}, {p.slot}\ns_cmp_eq_u32 {S_WSLOT}, {S_WEND}\ns_cselect_b32 {S_WSLOT}, {p.s_wbase}, {S_WSLOT}", None))
    return out


def gemm_x_stage(p, st):
    out = []
    for t in range(p.SPS):
        for tb in range(p.TB):
            out.append((f"buffer_load_dwordx4 {p.xreg((st % p.U) * p.SPS + t, tb)}, {p.xoff[tb]}, {S_WS}, {S_XSOFF} offen offset:{1024 * t}{p.xflags}", ("X", st)))
    out.append((f"s_add_u32 {S_XK}, {S_XK}, {1024 * p.SPS}\ns_cmp_lt_u32 {S_XK}, {p.xend}\ns_cselect_b32 {S_XSOFF}, {S_XK}, {OOB}", None))
    return out


def gemm_prologue(k, p):
    k(f"""s_mov_b32 {S_WSLOT}, {p.s_wbase}
    s_add_u32 {S_WEND}, {p.s_wbase}, {p.S * p.slot}
    s_mov_b32 {S_WSOFF}, 0
    s_mov_b32 {S_XK}, {p.xbase}
    s_mov_b32 {S_XSOFF}, {p.xbase}
    s_mov_b32 {S_RD}, 0""")
    for st in range(max(p.DW, p.U - 1)):
        if st < p.DW:
            for t, tag in gemm_w_stage(p, st):
                k(t, tag)
        if st < p.U - 1:
            for t, tag in gemm_x_stage(p, st):
                k(t, tag)


def frag_reads(p, f, g):
    t, nb = divmod(f, p.NB)
    return p.wread(t, nb, p.wbase + 4 * (g % p.NWF))


def gemm_main(k, p):
    F = p.SPS * p.NB
    k.wait(("W", 0))
    k("s_barrier")
    for f in range(p.LA):
        for t, _ in frag_reads(p, f, f):
            k(t)

    def stage(st):
        g0 = (st % p.U) * F
        NM = F * p.TB
        gaps = [[] for _ in range(NM)]
        last_use = {}
        for f in range(F):
            for _, a in frag_reads(p, f, 0):
                last_use[a] = f
        for f in range(F):
            fn = f + p.LA
            rds = frag_reads(p, fn % F, g0 + fn)
            if fn == F:
                gaps[f * p.TB] += [("WAIT", ("W", st + 1)), ("s_barrier", None)]
            for i, (t, a) in enumerate(rds):
                gaps[f * p.TB + min(i, p.TB - 1)].append((t, None))
            if fn < F:
                for a, lf in last_use.items():
                    if lf == fn and a in p.bump:
                        gaps[f * p.TB + p.TB - 1].append((f"v_add_u32 {a}, {S_DELTA}, {a}", None))
        assert min(last_use[a] for a in p.bump) >= p.LA + 1
        flex = [(f"s_add_u32 {S_RD}, {S_RD}, 1\ns_cmp_eq_u32 {S_RD}, {p.S}\ns_cselect_b32 {S_DELTA}, {-(p.S - 1) * p.slot}, {p.s_slot}\ns_cselect_b32 {S_RD}, 0, {S_RD}", None)]
        w = gemm_w_stage(p, st + p.DW)
        x = gemm_x_stage(p, st + p.U - 1)
        flex += w + x
        pref = [n for n in range(NM) if (n % p.TB) in p.flexpos and n < p.flexend * NM]
        for i, it in enumerate(flex):
            gaps[pref[(i * len(pref)) // len(flex)]].append(it)
        for f in range(F):
            t, nb = divmod(f, p.NB)
            w = ar(p.wbase + 4 * ((g0 + f) % p.NWF), 4)
            order = range(p.TB) if f % 2 == 0 else range(p.TB - 1, -1, -1)
            for i, tb in enumerate(order):
                x = p.xreg((st % p.U) * p.SPS + t, tb)
                a, b = (x, w) if p.swap(nb) else (w, x)
                k(f"v_mfma_f32_16x16x32_bf16 {p.acc(tb, nb)}, {a}, {b}, {p.acc(tb, nb)}")
                for txt, tag in gaps[f * p.TB + i]:
                    if txt == "WAIT":
                        k.wait(tag)
                    else:
                        k(txt, tag)

    assert (p.U * F) % p.NWF == 0 and p.NST % p.U == 0

    def body(it):
        for u in range(p.U):
            stage(it * p.U + u)
    k.loop(p.NST // p.U, body, S_CNT)


def dma_voff8(k, dst, tmp, rowstride, n, s_base, colfn):
    k(f"""v_lshrrev_b32 {tmp[0]}, 3, v0
    v_and_b32 {tmp[1]}, 2, {tmp[0]}
    v_lshlrev_b32 {tmp[1]}, 1, {tmp[1]}
    v_and_b32 {tmp[2]}, 7, v0
    v_xor_b32 {tmp[1]}, {tmp[1]}, {tmp[2]}
    v_mul_u32_u24 {tmp[0]}, {rowstride}, {tmp[0]}
    v_add_u32 {tmp[0]}, {s_base}, {tmp[0]}
    v_xor_b32 {tmp[2]}, 2, {tmp[1]}
    v_lshl_add_u32 {tmp[1]}, {tmp[1]}, 4, {tmp[0]}
    v_lshl_add_u32 {tmp[2]}, {tmp[2]}, 4, {tmp[0]}""")
    for i in range(n):
        bit3, const = colfn(i)
        k(f"v_add_u32 {dst[i]}, {const}, {tmp[1 + bit3]}")


def zero_acc(k, base, n):
    for i in range(n):
        k(f"v_mov_b32 v{base + i}, 0")


def pack_pair(k, d, a0, a1):
    k(f"""v_cvt_pk_bf16_f32 v{d}, v{a0}, v{a0 + 1}
    v_cvt_pk_bf16_f32 v{d + 1}, v{a0 + 2}, v{a0 + 3}
    v_cvt_pk_bf16_f32 v{d + 2}, v{a1}, v{a1 + 1}
    v_cvt_pk_bf16_f32 v{d + 3}, v{a1 + 2}, v{a1 + 3}""")


def swap_pair(k, d, which=16):
    k(f"""v_permlane{which}_swap_b32 v{d}, v{d + 2}
    v_permlane{which}_swap_b32 v{d + 1}, v{d + 3}""")


def k_qkv():
    k = Kernel("qkv_kernel")
    head(k, 1)
    srd(k, 12, 1, 1024 * 6144)
    k(f"""s_and_b32 s28, {S_XCD}, 1
    s_lshl_b32 s28, s28, 3
    s_and_b32 s3, {S_J}, 7
    s_add_u32 s28, s28, s3
    s_lshr_b32 s29, {S_XCD}, 1
    s_lshl_b32 s29, s29, 2
    s_lshr_b32 s3, {S_J}, 3
    s_add_u32 s29, s29, s3""")
    p = G()
    p.TB, p.NB, p.SPS, p.NST, p.U, p.S, p.DW = 2, 12, 2, 16, 4, 6, 4
    p.slot, p.NWF, p.LA = 24576, 6, 5
    p.wstep = 64 * 6144
    ACC = 128
    p.acc = lambda tb, nb: vr(ACC + 4 * (tb * 12 + nb), 4)
    p.xreg = lambda s, tb: ar(8 * s + 4 * tb, 4)
    p.wbase = 64
    p.swap = lambda nb: nb >= 8
    p.xoff = ["v2", "v3"]
    p.xflags = ""
    p.xbase, p.xend = WS_XN, WS_XN + 32768
    RA = ["v4", "v5", "v6", "v7"]
    p.bump = RA
    p.wread = lambda t, nb, r: [(f"ds_read_b64_tr_b16 {ar(r + 2 * rd, 2)}, {RA[nb % 4]} offset:{t * 12288 + (nb // 4) * 2048 + rd * 512}", RA[nb % 4]) for rd in range(2)]
    DV = ["v8", "v9", "v10", "v11", "v12", "v13"]
    p.dma = [(0, [(DV[i], S_W, 1024 * i) for i in range(4)]), (4096, [(DV[4 + i], S_W, 1024 * i) for i in range(2)])]
    p.s_wbase, p.s_slot = "s30", "s31"
    p.flexpos, p.flexend = (0,), 0.9
    k(f"""s_mul_i32 s30, {S_WAVE}, 6144
    s_mov_b32 s31, {p.slot}
    s_mul_i32 s3, {S_WAVE}, {16 * 6144}
    s_lshl_b32 s19, s29, 7
    s_add_u32 s3, s3, s19""")
    dma_voff8(k, DV, ["v14", "v15", "v16"], 6144, 6, "s3", lambda i: (i % 2, (i % 2) * 8 * 6144 + (i // 2) * 2048 - (i % 4) * 1024))
    k(f"""s_lshl_b32 s3, s28, 3
    s_lshl_b32 s19, {S_WAVE}, 1
    s_add_u32 s3, s3, s19
    s_lshl_b32 s3, s3, 15
    v_lshl_add_u32 v2, v0, 4, s3
    v_add_u32 v3, 0x8000, v2""")
    gemm_prologue(k, p)
    lane_terms(k, "v14", "v15", "v16")
    k(f"""v_lshrrev_b32 v17, 1, v15
    v_mul_u32_u24 v17, 6144, v17
    v_and_b32 v15, 1, v15
    v_lshl_add_u32 v17, v15, 10, v17
    v_lshl_add_u32 v17, v14, 7, v17
    v_and_b32 v14, 3, v0
    v_lshl_add_u32 v17, v14, 3, v17""")
    for j in range(4):
        k(f"""v_xor_b32 v14, {j}, v16
        v_lshl_add_u32 {RA[j]}, v14, 5, v17""")
    zero_acc(k, ACC, 96)
    k(f"""v_lshlrev_b32 v20, 4, v0
    v_and_b32 v21, 0x33, v0
    v_bfe_u32 v14, v0, 2, 1
    v_lshl_or_b32 v21, v14, 3, v21
    v_bfe_u32 v14, v0, 3, 1
    v_lshl_or_b32 v21, v14, 2, v21
    v_lshlrev_b32 v21, 4, v21
    s_lshl_b32 s32, s28, 2
    s_add_u32 s32, s32, {S_WAVE}
    s_lshl_b32 s3, s29, 7
    s_add_u32 s32, s32, s3
    s_lshl_b32 s33, s32, 12
    s_add_u32 s33, s33, {WS_KV}
    s_add_u32 s35, s33, {64 * 4096}
    s_lshl_b32 s32, s32, 11
    s_add_u32 s32, s32, {WS_Q}
    s_add_u32 s34, s32, {64 * 2048}
    s_mov_b32 s56, {f32(32 ** -0.5 * LOG2E)}""")
    stamp(k, 1)
    gemm_main(k, p)
    stamp(k, 2)
    a = lambda tb, nb: ACC + 4 * (tb * 12 + nb)
    d = 32
    for h in range(2):
        for F in range(2):
            nb = 4 + 2 * h + F
            pack_pair(k, d, a(0, nb), a(1, nb))
            nb = 8 + 2 * h
            pack_pair(k, d + 4, a(F, nb), a(F, nb + 1))
            swap_pair(k, d)
            swap_pair(k, d + 4)
            k(f"buffer_store_dwordx4 {vr(d, 4)}, v21, {S_WS}, {('s33', 's35')[h]} offen offset:{1024 * F}")
            k(f"buffer_store_dwordx4 {vr(d + 4, 4)}, v20, {S_WS}, {('s33', 's35')[h]} offen offset:{2048 + 1024 * F}")
            d += 8
    for nb in range(4):
        for tb in range(2):
            for r in range(4):
                k(f"v_mul_f32 v{a(tb, nb) + r}, s56, v{a(tb, nb) + r}")
        pack_pair(k, d, a(0, nb), a(1, nb))
        swap_pair(k, d)
        k(f"buffer_store_dwordx4 {vr(d, 4)}, v20, {S_WS}, {('s32', 's34')[nb // 2]} offen offset:{1024 * (nb % 2)}")
        d += 4
    tail(k)
    return k, 256 + 88, 256, p.S * p.slot


def k_attn():
    k = Kernel("attn_kernel")
    head(k, 2)
    k(f"""s_lshl_b32 s28, {S_XCD}, 2
    s_and_b32 s3, {S_J}, 3
    s_add_u32 s28, s28, s3
    s_lshr_b32 s29, {S_J}, 2""")
    TPS = 4
    NS = 4
    NSTG = 64 // TPS
    SLOT = TPS * 4096
    S_KV, S_M0, S_M0B, S_M0E = "s20", "s21", "s22", "s23"
    Q = [16, 24]
    NEG = [32, 48]
    S = [64, 80]
    P = [96, 104]
    O = [112, 128]
    L = [144, 148]
    SEL = 152
    KF = [0, 8]
    VF = [16, 24]
    k(f"""v_lshlrev_b32 v2, 4, v0
    s_lshl_b32 {S_KV}, s28, 18
    s_lshl_b32 s3, {S_WAVE}, 12
    s_add_u32 {S_KV}, {S_KV}, s3
    s_add_u32 {S_KV}, {S_KV}, {WS_KV}
    s_mov_b32 {S_M0B}, s3
    s_mov_b32 {S_M0}, s3
    s_add_u32 {S_M0E}, s3, {NS * SLOT}
    s_lshl_b32 s30, s28, 6
    s_lshl_b32 s3, s29, 3
    s_add_u32 s30, s30, s3
    s_lshl_b32 s3, {S_WAVE}, 1
    s_add_u32 s30, s30, s3
    s_lshl_b32 s30, s30, 11
    s_add_u32 s30, s30, {WS_Q}
    s_add_u32 s31, {S_KV}, {64 * 4096}""")

    def dma(st):
        out = [(f"s_mov_b32 m0, {S_M0}", None)]
        for i in range(4):
            out.append((f"buffer_load_dwordx4 v2, {S_WS}, {S_KV} offen offset:{1024 * i} lds", ("KV", st)))
        out.append((f"s_add_u32 {S_KV}, {S_KV}, {SLOT}\ns_cmp_lt_u32 {S_KV}, s31\ns_cselect_b32 {S_KV}, {S_KV}, {OOB}", None))
        out.append((f"s_add_u32 {S_M0}, {S_M0}, {SLOT}\ns_cmp_eq_u32 {S_M0}, {S_M0E}\ns_cselect_b32 {S_M0}, {S_M0B}, {S_M0}", None))
        return out
    for t, tag in dma(0):
        k(t, tag)
    for i in range(4):
        k(f"buffer_load_dwordx4 {vr(Q[0] + 4 * i, 4)}, v2, {S_WS}, s30 offen offset:{1024 * i}")
    for t, tag in dma(1):
        k(t, tag)
    k(f"""v_lshrrev_b32 v3, 2, v0
    v_lshrrev_b32 v4, 4, v0
    v_xor_b32 v3, v3, v4
    v_and_b32 v3, 1, v3
    v_cmp_eq_u32 vcc, 0, v3
    v_mov_b32 v4, 0x3f803f80
    v_cndmask_b32 v{SEL}, 0, v4, vcc
    v_mov_b32 v{SEL + 1}, v{SEL}
    v_mov_b32 v{SEL + 2}, v{SEL}
    v_mov_b32 v{SEL + 3}, v{SEL}
    v_mov_b32 v3, v2""")
    zero_acc(k, O[0], 40)
    zero_acc(k, P[0], 16)
    for i in range(8):
        k(f"v_accvgpr_write_b32 a{VF[1] + i}, 0")
    k(f"""v_bfe_u32 v5, v0, 4, 1
    v_lshlrev_b32 v5, 15, v5
    v_lshrrev_b32 v6, 5, v0
    v_lshl_add_u32 v5, v6, 8, v5
    v_and_b32 v6, 15, v0
    v_lshl_add_u32 v5, v6, 4, v5
    s_lshl_b32 s32, s29, 4
    s_lshl_b32 s3, {S_WAVE}, 2
    s_add_u32 s32, s32, s3
    s_lshl_b32 s32, s32, 15
    s_lshl_b32 s3, s28, 10
    s_add_u32 s32, s32, s3
    s_add_u32 s32, s32, {WS_O}
    s_add_u32 s33, s32, 0x10000""")

    def mm(d, a, b, c):
        return f"v_mfma_f32_32x32x16_bf16 {vr(d, 16)}, {a}, {b}, {c}"

    def rdK(n, buf):
        return [f"ds_read_b128 {ar(KF[buf] + 4 * i, 4)}, v3 offset:{(n % TPS) * 4096 + 1024 * i}" for i in range(2)]

    def rdV(n, buf):
        return [f"ds_read_b128 {ar(VF[buf] + 4 * i, 4)}, v3 offset:{(n % TPS) * 4096 + 2048 + 1024 * i}" for i in range(2)]
    k.wait(("KV", 0))
    k("s_barrier")
    stamp(k, 1)
    for t in rdK(0, 0):
        k(t)
    for q in range(2):
        k(mm(S[q], ar(KF[0], 4), vr(Q[q], 4), "0"))
        k(mm(S[q], ar(KF[0] + 4, 4), vr(Q[q] + 4, 4), vr(S[q], 16)))
    for q in range(2):
        s = S[q]
        k(f"v_max3_f32 v6, v{s}, v{s + 1}, v{s + 2}")
        for i in range(3, 15, 2):
            k(f"v_max3_f32 v6, v6, v{s + i}, v{s + i + 1}")
        k(f"v_max_f32 v6, v6, v{s + 15}")
        swap_sum(k, "v6", "v7", 32, "v_max_f32")
        for i in range(16):
            k(f"v_sub_f32 v{NEG[q] + i}, 0, v6")
    k(mm(S[0], ar(KF[0], 4), vr(Q[0], 4), vr(NEG[0], 16)))
    k(mm(S[0], ar(KF[0] + 4, 4), vr(Q[0] + 4, 4), vr(S[0], 16)))

    def half(q, kbuf, vbuf, fill):
        o = 1 - q
        mf = [mm(S[o], ar(KF[kbuf], 4), vr(Q[o], 4), vr(NEG[o], 16)),
              mm(S[o], ar(KF[kbuf] + 4, 4), vr(Q[o] + 4, 4), vr(S[o], 16)),
              mm(O[o], ar(VF[vbuf], 4), vr(P[o], 4), vr(O[o], 16)),
              mm(O[o], ar(VF[vbuf] + 4, 4), vr(P[o] + 4, 4), vr(O[o], 16)),
              f"v_mfma_f32_16x16x32_bf16 {vr(L[o], 4)}, {vr(SEL, 4)}, {vr(P[o], 4)}, {vr(L[o], 4)}",
              f"v_mfma_f32_16x16x32_bf16 {vr(L[o], 4)}, {vr(SEL, 4)}, {vr(P[o] + 4, 4)}, {vr(L[o], 4)}"]
        e = lambda i: f"v_exp_f32 v{S[q] + i}, v{S[q] + i}"
        c = lambda i: f"v_cvt_pk_bf16_f32 v{P[q] + i}, v{S[q] + 2 * i}, v{S[q] + 2 * i + 1}"
        seq = [mf[0], e(0), e(1), e(2), c(0),
               mf[1], e(3), e(4), c(1), e(5), e(6),
               mf[2], c(2), e(7), e(8), c(3), e(9),
               mf[3], e(10), c(4), e(11), e(12), c(5),
               mf[4], e(13), e(14),
               mf[5], e(15), c(6), c(7)]
        fill = list(fill)
        slots = [i for i, s in enumerate(seq) if s.startswith("v_exp")]
        place = {}
        for i, f in enumerate(fill):
            place.setdefault(slots[i], []).append(f)
        for i, s in enumerate(seq):
            k(s)
            for txt, tag in place.get(i, []):
                if txt == "WAIT":
                    k.wait(tag)
                else:
                    k(txt, tag)

    def body(st):
        d = dma(st + 2)
        for n in range(TPS):
            kb = n % 2
            f = [(t, None) for t in rdV(n, kb)]
            if n == TPS - 1:
                f += [("WAIT", ("KV", st + 1)), ("s_barrier", None),
                      (f"v_add_u32 v3, {SLOT}, v3", None), (f"v_and_b32 v3, {NS * SLOT - 1}, v3", None)]
            f += [(t, None) for t in rdK(n + 1, 1 - kb)]
            half(0, kb, 1 - kb, f)
            f = d[:4] if n == 0 else d[4:] if n == 1 else []
            half(1, 1 - kb, kb, f)
    k.loop(NSTG, body, S_CNT)
    k(mm(O[1], ar(VF[1], 4), vr(P[1], 4), vr(O[1], 16)))
    k(mm(O[1], ar(VF[1] + 4, 4), vr(P[1] + 4, 4), vr(O[1], 16)))
    for i in range(2):
        k(f"v_mfma_f32_16x16x32_bf16 {vr(L[1], 4)}, {vr(SEL, 4)}, {vr(P[1] + 4 * i, 4)}, {vr(L[1], 4)}")
    stamp(k, 2)
    for q in range(2):
        k(f"v_rcp_f32 v6, v{L[q]}")
        for i in range(16):
            k(f"v_mul_f32 v{O[q] + i}, v{O[q] + i}, v6")
        for a in (0, 2):
            d = S[q] + 2 * a
            pack_pair(k, d, O[q] + 4 * a, O[q] + 4 * a + 4)
            swap_pair(k, d, 32)
            k(f"buffer_store_dwordx4 {vr(d, 4)}, v5, {S_WS}, {('s32', 's33')[q]} offen offset:{256 * a}")
    tail(k)
    return k, 256 + 32, 256, NS * SLOT


def narrow_setup(k, p, kdim, wslot, xbase, extra):
    srd(k, 12, wslot, kdim * 2048)
    k(f"""s_lshr_b32 s28, {S_XCD}, 1
    s_lshl_b32 s28, s28, 2
    s_and_b32 s3, {S_J}, 3
    s_add_u32 s28, s28, s3
    s_and_b32 s29, {S_XCD}, 1
    s_lshl_b32 s29, s29, 3
    s_lshr_b32 s3, {S_J}, 2
    s_add_u32 s29, s29, s3""")
    p.TB, p.NB, p.SPS, p.NST, p.U, p.S, p.DW = 2, 4 + extra, 4, kdim // 128, 4, 8, 4
    p.slot, p.NWF, p.LA = 16384, (10 if extra else 8), 5
    p.wstep = 128 * 2048
    p.ACC = 128
    p.acc = lambda tb, nb: vr(p.ACC + 4 * (tb * p.NB + nb), 4)
    p.xreg = lambda s, tb: ar(8 * s + 4 * tb, 4)
    p.wbase = 128
    p.swap = lambda nb: False
    p.xoff = ["v2", "v3"]
    p.xflags = ""
    p.xbase, p.xend = xbase, xbase + kdim * 32
    RA = ["v4", "v5", "v6", "v7"]
    p.bump = RA

    def wread(t, nb, r):
        if nb == 4:
            out = [(f"ds_read_b128 {ar(r, 4)}, v18 offset:{t * 64}", "v18")]
            if t == 3:
                out.append(("v_add_u32 v18, 256, v18", "v18"))
            return out
        return [(f"ds_read_b64_tr_b16 {ar(r + 2 * rd, 2)}, {RA[nb]} offset:{t * 4096 + rd * 512}", RA[nb]) for rd in range(2)]
    p.wread = wread
    DV = ["v8", "v9", "v10", "v11"]
    p.dma = [(0, [(DV[i], S_W, 1024 * i) for i in range(4)])]
    p.s_wbase, p.s_slot = "s30", "s31"
    p.flexpos, p.flexend = (0,), 1.0
    k(f"""s_lshl_b32 s30, {S_WAVE}, 12
    s_mov_b32 s31, {p.slot}
    s_lshl_b32 s3, {S_WAVE}, 16
    s_lshl_b32 s19, s29, 7
    s_add_u32 s3, s3, s19""")
    dma_voff8(k, DV, ["v14", "v15", "v16"], 2048, 4, "s3", lambda i: (i % 2, i * 8 * 2048 - i * 1024))
    k(f"""s_lshl_b32 s32, s28, 3
    s_lshl_b32 s19, {S_WAVE}, 1
    s_add_u32 s32, s32, s19
    s_mul_i32 s3, s32, {kdim * 32}
    v_lshl_add_u32 v2, v0, 4, s3
    v_add_u32 v3, {kdim * 32}, v2""")


def narrow_raddr(k):
    lane_terms(k, "v14", "v15", "v16")
    k(f"""v_lshlrev_b32 v17, 10, v15
    v_lshl_add_u32 v17, v14, 7, v17
    v_and_b32 v14, 3, v0
    v_lshl_add_u32 v17, v14, 3, v17""")
    for j in range(4):
        k(f"""v_xor_b32 v14, {j}, v16
        v_lshl_add_u32 v{4 + j}, v14, 5, v17""")


def t16_pair_addr(k, dst, tmp, tbstride):
    k(f"""v_bfe_u32 {dst}, v0, 4, 1
    v_mul_u32_u24 {dst}, {tbstride}, {dst}
    v_lshrrev_b32 {tmp}, 5, v0
    v_lshl_add_u32 {dst}, {tmp}, 8, {dst}
    v_and_b32 {tmp}, 15, v0
    v_lshl_add_u32 {dst}, {tmp}, 4, {dst}""")


def rowmajor_pair_addr(k, dst, tmp):
    k(f"""v_and_b32 {dst}, 31, v0
    v_lshlrev_b32 {dst}, 11, {dst}
    v_lshrrev_b32 {tmp}, 5, v0
    v_lshl_add_u32 {dst}, {tmp}, 4, {dst}""")


def unpack_pair(k, d, src, msk):
    swap_pair(k, src)
    for i in range(4):
        k(f"""v_lshlrev_b32 v{d + 2 * i}, 16, v{src + i}
        v_and_b32 v{d + 2 * i + 1}, {msk}, v{src + i}""")


def k_wo():
    k = Kernel("wo_kernel")
    head(k, 3)
    p = G()
    narrow_setup(k, p, 1024, 2, WS_O, 1)
    srd(k, 8, 0, 2048 * 2048)
    WB = p.S * p.slot
    k(f"""s_lshl_b32 s3, {S_WAVE}, 10
    s_add_u32 m0, s3, {WB}
    s_add_u32 s3, s3, {WS_WBAR}
    v_lshlrev_b32 v14, 4, v0""")
    k(f"buffer_load_dwordx4 v14, {S_WS}, s3 offen lds", ("W", 0))
    gemm_prologue(k, p)
    narrow_raddr(k)
    k(f"""v_and_b32 v18, 1, v0
    v_lshlrev_b32 v18, 11, v18
    v_lshl_add_u32 v18, v15, 4, v18
    v_add_u32 v18, {WB}, v18""")
    zero_acc(k, p.ACC, 40)
    rowmajor_pair_addr(k, "v20", "v14")
    t16_pair_addr(k, "v21", "v14", 32768)
    k(f"""s_lshl_b32 s33, s32, 15
    s_lshl_b32 s3, s29, 7
    s_add_u32 s34, s33, s3
    s_lshl_b32 s3, s29, 11
    s_add_u32 s33, s33, s3
    s_add_u32 s33, s33, {WS_HC}
    v_and_b32 v22, 15, v0
    v_lshlrev_b32 v22, 2, v22
    s_lshl_b32 s35, s32, 6
    s_add_u32 s56, s35, {WS_MEANH}
    s_add_u32 s35, s35, {WS_MEANX}
    s_lshl_b32 s57, s32, 10
    s_lshl_b32 s3, s29, 6
    s_add_u32 s57, s57, s3
    s_add_u32 s57, s57, {WS_VARP}
    s_mov_b32 s58, 0xffff0000""")
    for nb in range(4):
        k(f"buffer_load_dwordx4 {vr(32 + 4 * nb, 4)}, v20, {S_A}, s34 offen offset:{32 * nb}")
    for tb in range(2):
        k(f"buffer_load_dword v{24 + tb}, v22, {S_WS}, s35 offen offset:{64 * tb}")
    stamp(k, 1)
    gemm_main(k, p)
    stamp(k, 2)
    a = lambda tb, nb: p.ACC + 4 * (tb * 5 + nb)
    for nb in range(4):
        unpack_pair(k, 48 + 8 * nb, 32 + 4 * nb, "s58")
    for tb in range(2):
        k(f"""v_add_f32 v{24 + tb}, v{24 + tb}, v{a(tb, 4)}
        v_add_f32 v{24 + tb}, v{24 + tb}, v{a(tb, 4) + 1}""")
    for nb in range(4):
        for tb in range(2):
            for r in range(4):
                k(f"v_sub_f32 v{48 + 8 * nb + 4 * tb + r}, v{48 + 8 * nb + 4 * tb + r}, v{24 + tb}")
        for tb in range(2):
            for r in range(4):
                k(f"v_add_f32 v{a(tb, nb) + r}, v{a(tb, nb) + r}, v{48 + 8 * nb + 4 * tb + r}")
        pack_pair(k, 32 + 4 * nb, a(0, nb), a(1, nb))
        swap_pair(k, 32 + 4 * nb)
        k(f"buffer_store_dwordx4 {vr(32 + 4 * nb, 4)}, v21, {S_WS}, s33 offen offset:{512 * nb}")
    for tb in range(2):
        k(f"v_mul_f32 v{26 + tb}, v{a(tb, 0)}, v{a(tb, 0)}")
    for i in range(1, 16):
        for tb in range(2):
            k(f"v_fmac_f32 v{26 + tb}, v{a(tb, 0) + i}, v{a(tb, 0) + i}")
    for tb in range(2):
        swap_sum(k, f"v{26 + tb}", "v28", 16)
        swap_sum(k, f"v{26 + tb}", "v28", 32)
    k("s_mov_b64 exec, 0xffff")
    for tb in range(2):
        k(f"buffer_store_dword v{26 + tb}, v22, {S_WS}, s57 offen offset:{1024 * tb}")
        k(f"buffer_store_dword v{24 + tb}, v22, {S_WS}, s56 offen offset:{64 * tb}")
    k("s_mov_b64 exec, -1")
    tail(k)
    return k, 256 + 168, 256, WB + 4096


def load_varp(k, dst, vaddr, soff, ntb):
    for tb in range(ntb):
        for i in range(4):
            k(f"buffer_load_dword {dst(tb, i)}, {vaddr}, {S_WS}, {soff} offen offset:{1024 * tb + 64 * i}")


def k_ffn2():
    k = Kernel("ffn2_kernel")
    head(k, 5)
    p = G()
    narrow_setup(k, p, 3584, 6, WS_ACT, 0)
    srd(k, 8, 7, 2048 * 2048)
    gemm_prologue(k, p)
    narrow_raddr(k)
    zero_acc(k, p.ACC, 32)
    rowmajor_pair_addr(k, "v20", "v14")
    t16_pair_addr(k, "v21", "v14", 32768)
    k(f"""s_lshl_b32 s33, s32, 15
    s_lshl_b32 s3, s29, 7
    s_add_u32 s34, s33, s3
    s_lshl_b32 s3, s29, 11
    s_add_u32 s33, s33, s3
    s_add_u32 s33, s33, {WS_HC}
    v_and_b32 v22, 15, v0
    v_lshlrev_b32 v22, 2, v22
    v_lshl_add_u32 v23, v15, 8, v22
    s_lshl_b32 s35, s32, 6
    s_add_u32 s35, s35, {WS_MEANH}
    s_lshl_b32 s57, s32, 10
    s_add_u32 s57, s57, {WS_VARP}
    s_mov_b32 s58, 0xffff0000""")
    for nb in range(4):
        k(f"buffer_load_dwordx4 {vr(32 + 4 * nb, 4)}, v21, {S_WS}, s33 offen offset:{512 * nb}")
    for tb in range(2):
        k(f"buffer_load_dword v{24 + tb}, v22, {S_WS}, s35 offen offset:{64 * tb}")
    load_varp(k, lambda tb, i: f"v{80 + 4 * tb + i}", "v23", "s57", 2)
    stamp(k, 1)
    gemm_main(k, p)
    stamp(k, 2)
    a = lambda tb, nb: p.ACC + 4 * (tb * 4 + nb)
    for tb in range(2):
        b = 80 + 4 * tb
        k(f"""v_add_f32 v{b}, v{b}, v{b + 1}
        v_add_f32 v{b + 2}, v{b + 2}, v{b + 3}
        v_add_f32 v{b}, v{b}, v{b + 2}""")
        swap_sum(k, f"v{b}", "v28", 16)
        swap_sum(k, f"v{b}", "v28", 32)
        k(f"""v_mov_b32 v{26 + tb}, {f32(1e-5)}
        v_fmac_f32 v{26 + tb}, {f32(1 / 1024)}, v{b}
        v_rcp_f32 v{26 + tb}, v{26 + tb}""")
    for nb in range(4):
        unpack_pair(k, 48 + 8 * nb, 32 + 4 * nb, "s58")
        for tb in range(2):
            for r in range(4):
                k(f"v_add_f32 v{48 + 8 * nb + 4 * tb + r}, v{48 + 8 * nb + 4 * tb + r}, v{24 + tb}")
        for tb in range(2):
            for r in range(4):
                k(f"v_fma_f32 v{a(tb, nb) + r}, v{a(tb, nb) + r}, v{26 + tb}, v{48 + 8 * nb + 4 * tb + r}")
        pack_pair(k, 32 + 4 * nb, a(0, nb), a(1, nb))
        swap_pair(k, 32 + 4 * nb)
        k(f"buffer_store_dwordx4 {vr(32 + 4 * nb, 4)}, v20, {S_A}, s34 offen offset:{32 * nb}")
    tail(k)
    return k, 256 + 160, 256, p.S * p.slot


def k_ffn1():
    k = Kernel("ffn1_kernel")
    head(k, 4)
    srd(k, 12, 4, 1024 * 7168)
    srd(k, 8, 5, 1024 * 7168)
    k(f"""s_and_b32 s28, {S_XCD}, 1
    s_lshl_b32 s28, s28, 2
    s_and_b32 s3, {S_J}, 3
    s_add_u32 s28, s28, s3
    s_lshr_b32 s29, {S_XCD}, 1
    s_lshl_b32 s29, s29, 3
    s_lshr_b32 s3, {S_J}, 2
    s_add_u32 s29, s29, s3""")
    p = G()
    p.TB, p.NB, p.SPS, p.NST, p.U, p.S, p.DW = 4, 14, 2, 16, 4, 4, 2
    p.slot, p.NWF, p.LA = 32768, 7, 3
    p.wstep = 64 * 7168
    ACC = 32
    p.acc = lambda tb, nb: vr(ACC + 4 * (tb * 14 + nb), 4)
    p.xreg = lambda s, tb: ar(16 * s + 4 * tb, 4)
    p.wbase = 128
    p.swap = lambda nb: False
    p.xoff = ["v2", "v3", "v12", "v13"]
    p.xflags = ""
    p.xbase, p.xend = WS_HC, WS_HC + 32768
    RA = ["v4", "v5", "v6", "v7"]
    p.bump = RA
    p.wread = lambda t, nb, r: [(f"ds_read_b64_tr_b16 {ar(r + 2 * rd, 2)}, {RA[(nb // 2) % 4]} offset:{(nb % 2) * 16384 + (8 * t + rd) * 1024 + (nb // 8) * 512}", RA[(nb // 2) % 4]) for rd in range(2)]
    DV = ["v8", "v9", "v10", "v11"]
    p.dma = [(0, [(DV[i], S_W, 1024 * i) for i in range(4)]), (16384, [(DV[i], S_A, 1024 * i) for i in range(4)])]
    p.s_wbase, p.s_slot = "s30", "s31"
    p.flexpos, p.flexend = (2,), 0.85
    k(f"""s_lshl_b32 s30, {S_WAVE}, 12
    s_mov_b32 s31, {p.slot}
    s_mul_i32 s3, {S_WAVE}, {16 * 7168}
    s_mul_i32 s19, s29, 224
    s_and_b32 s19, s19, 0xffffffc0
    s_add_u32 s3, s3, s19
    v_bfe_u32 v14, v0, 3, 2
    v_and_b32 v15, 2, v14
    v_lshlrev_b32 v15, 1, v15
    v_and_b32 v16, 7, v0
    v_xor_b32 v15, v15, v16
    v_mul_u32_u24 v14, 7168, v14
    v_add_u32 v14, s3, v14
    v_lshrrev_b32 v16, 5, v0
    v_lshl_add_u32 v14, v16, 7, v14
    v_xor_b32 v16, 2, v15
    v_lshl_add_u32 v15, v15, 4, v14
    v_lshl_add_u32 v16, v16, 4, v14""")
    for i in range(4):
        k(f"v_add_u32 {DV[i]}, {i * 4 * 7168 - i * 1024}, v{15 + i // 2}")
    k(f"""s_lshl_b32 s32, s28, 4
    s_lshl_b32 s19, {S_WAVE}, 2
    s_add_u32 s32, s32, s19
    s_lshl_b32 s3, s32, 15
    v_lshl_add_u32 v2, v0, 4, s3
    v_add_u32 v3, 0x8000, v2
    v_add_u32 v12, 0x10000, v2
    v_add_u32 v13, 0x18000, v2
    v_and_b32 v14, 15, v0
    v_lshlrev_b32 v14, 2, v14
    v_lshrrev_b32 v15, 4, v0
    v_lshl_add_u32 v14, v15, 8, v14
    s_lshl_b32 s57, s32, 10
    s_add_u32 s57, s57, {WS_VARP}""")
    load_varp(k, lambda tb, i: f"v{16 + 4 * tb + i}", "v14", "s57", 4)
    gemm_prologue(k, p)
    lane_terms(k, "v14", "v15", "v1")
    k(f"""v_lshlrev_b32 v15, 11, v15
    v_lshl_add_u32 v15, v14, 7, v15
    v_and_b32 v14, 3, v0
    v_lshl_add_u32 v15, v14, 3, v15
    s_and_b32 s19, s29, 1""")
    for j in range(4):
        k(f"""s_add_u32 s3, s19, {j}
        s_and_b32 s33, s3, 3
        s_lshr_b32 s3, s3, 2
        s_lshl_b32 s3, s3, 9
        v_xor_b32 v14, s33, v1
        v_lshl_add_u32 {RA[j]}, v14, 5, v15
        v_add_u32 {RA[j]}, s3, {RA[j]}""")
    zero_acc(k, ACC, 224)
    t16_pair_addr(k, "v1", "v14", 3584 * 32)
    k(f"""s_mul_i32 s34, s32, {3584 * 32}
    s_mul_i32 s3, s29, {7 * 512}
    s_add_u32 s34, s34, s3
    s_add_u32 s34, s34, {WS_ACT}
    s_add_u32 s35, s34, {2 * 3584 * 32}""")
    for tb in range(4):
        b = 16 + 4 * tb
        k(f"""v_add_f32 v{b}, v{b}, v{b + 1}
        v_add_f32 v{b + 2}, v{b + 2}, v{b + 3}
        v_add_f32 v{b}, v{b}, v{b + 2}""")
        swap_sum(k, f"v{b}", "v14", 16)
        swap_sum(k, f"v{b}", "v14", 32)
        k(f"""v_mov_b32 v14, {f32(1e-5)}
        v_fmac_f32 v14, {f32(1 / 1024)}, v{b}
        v_rsq_f32 v14, v14
        v_mul_f32 v{16 + 2 * tb}, {f32(-LOG2E)}, v14
        v_mov_b32 v{17 + 2 * tb}, v{16 + 2 * tb}""")
    stamp(k, 1)
    gemm_main(k, p)
    stamp(k, 2)
    a = lambda tb, nb: ACC + 4 * (tb * 14 + nb)
    T = 24
    for j in range(7):
        for tp in range(2):
            for tb in (2 * tp, 2 * tp + 1):
                g, u, t = a(tb, 2 * j), a(tb, 2 * j + 1), T + 4 * (tb % 2)
                for h in (0, 2):
                    k(f"v_pk_mul_f32 {vr(t + h, 2)}, {vr(g + h, 2)}, {vr(16 + 2 * tb, 2)}")
                for h in (0, 2):
                    k(f"v_pk_mul_f32 {vr(g + h, 2)}, {vr(g + h, 2)}, {vr(u + h, 2)}")
            for i in range(8):
                k(f"v_exp_f32 v{T + i}, v{T + i}")
            for i in range(0, 8, 2):
                k(f"v_pk_add_f32 {vr(T + i, 2)}, {vr(T + i, 2)}, 1.0 op_sel_hi:[1,0]")
            for i in range(8):
                k(f"v_rcp_f32 v{T + i}, v{T + i}")
            for tb in (2 * tp, 2 * tp + 1):
                g, t = a(tb, 2 * j), T + 4 * (tb % 2)
                for h in (0, 2):
                    k(f"v_pk_mul_f32 {vr(g + h, 2)}, {vr(g + h, 2)}, {vr(t + h, 2)}")
            d = a(2 * tp, 2 * j + 1)
            pack_pair(k, d, a(2 * tp, 2 * j), a(2 * tp + 1, 2 * j))
            swap_pair(k, d)
            k(f"buffer_store_dwordx4 {vr(d, 4)}, v1, {S_WS}, {('s34', 's35')[tp]} offen offset:{512 * j}")
    tail(k)
    return k, 256 + 160, 256, p.S * p.slot


def build():
    ks = [k_prep(), k_qkv(), k_attn(), k_wo(), k_ffn1(), k_ffn2()]
    hdr = open(f"cdna_kernels/{NAME}.s.ref").read().split("; Override launch")[0]
    out = hdr
    for k, vg, acc, lds in ks:
        out += f"; @launch kernel={k.name} grid=(256,1,1) block=(256,1,1) lds={lds}\n"
    out += '.amdgcn_target "amdgcn-amd-amdhsa--gfx950"\n.text\n'
    for k, vg, acc, lds in ks:
        out += k.text()
    out += '.section .rodata,"a"\n'
    for k, vg, acc, lds in ks:
        out += ".p2align 6\n" + descriptor(k.name, vg, acc)
    return out


if __name__ == "__main__":
    args = sys.argv[1:]
    if "--stamps" in args:
        STAMPS = True
        args.remove("--stamps")
    path = args[0] if args else f"cdna_kernels/{NAME}.s"
    open(path, "w").write(build())
```

```python
import re

TRANS = ("v_exp_f32", "v_log_f32", "v_rcp_f32", "v_rsq_f32", "v_sqrt_f32", "v_sin_f32", "v_cos_f32")
_REG = re.compile(r"^(-|\|)?(abs\()?([vas])(\d+)\)?\|?$")
_RNG = re.compile(r"^(-|\|)?([vas])\[(\d+):(\d+)\]$")


def regs_of(op):
    op = op.strip()
    m = _REG.match(op)
    if m:
        return [(m.group(3), int(m.group(4)))]
    m = _RNG.match(op)
    if m:
        return [(m.group(2), i) for i in range(int(m.group(3)), int(m.group(4)) + 1)]
    if op in ("vcc", "vcc_lo", "vcc_hi"):
        return [("x", "vcc")]
    if op in ("exec", "exec_lo", "exec_hi"):
        return [("x", "exec")]
    if op == "m0":
        return [("x", "m0")]
    return []


class Ins:
    __slots__ = ("text", "mn", "kind", "rd", "wr", "tag", "wait", "srcc", "srcab", "passes", "dpp", "pos", "wide")

    def __init__(self, text, tag=None):
        self.text = text
        self.tag = tag
        self.wait = None
        self.srcc = []
        self.srcab = []
        self.passes = 0
        self.dpp = False
        self.wide = False
        self.pos = None
        t = text.split(";")[0].strip()
        if t.endswith(":") or t.startswith(".") or t == "":
            self.mn, self.kind, self.rd, self.wr = "", "meta", [], []
            return
        parts = t.split(None, 1)
        mn = parts[0]
        self.mn = mn
        rest = parts[1] if len(parts) > 1 else ""
        ops = [o.strip() for o in re.split(r",(?![^\[]*\])", rest)] if rest else []
        mods = ""
        if ops:
            last = ops[-1].split(None, 1)
            ops[-1] = last[0]
            mods = last[1] if len(last) > 1 else ""
        R = [regs_of(o) for o in ops]
        flat = lambda l: [r for x in l for r in x]
        rd, wr = [], []
        if mn.startswith("v_mfma") or mn.startswith("v_smfmac"):
            self.kind = "mfma"
            wr = R[0]
            self.srcab = R[1] + R[2]
            self.srcc = R[3] if mn.startswith("v_mfma") else R[0]
            rd = self.srcab + self.srcc + (R[3] if mn.startswith("v_smfmac") else [])
            self.passes = 8 if "32x32" in mn else 4
        elif mn.startswith("v_"):
            base = re.sub(r"_(e32|e64|dpp|sdwa)$", "", mn)
            self.kind = "trans" if base in TRANS else "valu"
            self.dpp = bool(re.search(r"quad_perm|row_|wave_", mods))
            if "permlane" in mn and "swap" in mn:
                rd = flat(R); wr = flat(R)
            elif base == "v_swap_b32":
                rd = flat(R); wr = flat(R)
            elif base.startswith("v_cmpx"):
                wr = R[0] + [("x", "exec")]; rd = flat(R[1:])
            elif base in ("v_add_co_u32", "v_sub_co_u32", "v_addc_co_u32", "v_subb_co_u32"):
                wr = R[0] + R[1]; rd = flat(R[2:])
            else:
                wr = R[0]; rd = flat(R[1:])
                if base in ("v_fmac_f32", "v_dot2c_f32_bf16", "v_writelane_b32") or self.dpp or "UNUSED_PRESERVE" in mods:
                    rd = rd + R[0]
        elif mn.startswith("buffer_") or mn.startswith("global_"):
            lds = bool(re.search(r"\blds\b", mods)) or "_lds_" in mn
            if mn in ("buffer_wbl2", "buffer_inv"):
                self.kind = "vst"
            elif "load" in mn and not lds:
                self.kind = "vld"; wr = R[0]; rd = flat(R[1:])
            elif "load" in mn:
                self.kind = "dma"; rd = flat(R) + [("x", "m0")]
            elif "atomic" in mn and re.search(r"\bsc0\b", mods):
                self.kind = "vld"; wr = R[0]; rd = flat(R)
            else:
                self.kind = "vst"; rd = flat(R)
                if "x4" in mn or "x3" in mn:
                    self.wide = True
                    self.srcab = R[0] if mn.startswith("buffer_") else R[1]
        elif mn.startswith("ds_"):
            if "read" in mn or "permute" in mn or "swizzle" in mn:
                self.kind = "dsr"; wr = R[0]; rd = flat(R[1:])
            else:
                self.kind = "dsw"; rd = flat(R)
        elif mn.startswith("s_load") or mn in ("s_memtime", "s_memrealtime"):
            self.kind = "smem"; wr = R[0]; rd = flat(R[1:])
        elif mn == "s_waitcnt":
            self.kind = "wait"
            vm = re.search(r"vmcnt\((\d+)\)", t); lg = re.search(r"lgkmcnt\((\d+)\)", t)
            self.wait = [int(vm.group(1)) if vm else None, int(lg.group(1)) if lg else None]
        elif mn == "s_nop":
            self.kind = "nop"
        elif mn.startswith("s_cmp") or mn.startswith("s_bitcmp"):
            self.kind = "salu"; rd = flat(R)
        elif mn in ("s_barrier", "s_endpgm", "s_setprio", "s_sleep") or mn.startswith("s_cbranch") or mn == "s_branch":
            self.kind = "ctl"
        elif mn.startswith("s_"):
            self.kind = "salu"; wr = R[0]; rd = flat(R[1:])
            if mn in ("s_addk_i32", "s_mulk_i32", "s_bitset1_b32", "s_bitset0_b32"):
                rd = rd + R[0]
            if "saveexec" in mn:
                wr = wr + [("x", "exec")]; rd = rd + [("x", "exec")]
        else:
            raise ValueError("unknown instruction: " + text)
        self.rd, self.wr = rd, wr


class SymWait:
    kind = "symwait"

    def __init__(self, tags):
        self.tags = set(tags)
        self.pos = None
        self.text = "<wait>"


class Kernel:
    def __init__(self, name):
        self.name = name
        self.trace = []
        self.npos = 0
        self.static = []
        self._replay = None
        self._nlab = 0

    def _add(self, ins):
        if self._replay is not None:
            pos, text = self._replay.pop(0)
            assert text == ins.text, f"loop body differs between iterations: {text!r} vs {ins.text!r}"
            ins.pos = pos
        else:
            ins.pos = self.npos
            self.npos += 1
            self.static.append(ins)
        self.trace.append(ins)
        return ins

    def __call__(self, text, tag=None):
        for line in text.strip("\n").split("\n"):
            line = line.strip()
            if line:
                self._add(Ins(line, tag))

    def raw(self, text):
        ins = Ins("")
        ins.text = "    " + text
        self._add(ins)

    def wait(self, *tags):
        self._add(SymWait(tags))

    def label(self, base):
        self._nlab += 1
        return f"L_{self.name}_{base}_{self._nlab}"

    def loop(self, n, body, sreg, align=True):
        if n == 1:
            body(0)
            return
        assert self._replay is None
        lab = self.label("loop")
        self(f"s_mov_b32 {sreg}, {n}")
        if align:
            self(".p2align 5")
        self(f"{lab}:")
        start = len(self.static)

        def one(it):
            body(it)
            self(f"s_sub_u32 {sreg}, {sreg}, 1")
            self(f"s_cmp_lg_u32 {sreg}, 0")
            self(f"s_cbranch_scc1 {lab}")
        one(0)
        skel = [(i.pos, i.text) for i in self.static[start:]]
        for it in range(1, n):
            self._replay = list(skel)
            one(it)
            assert not self._replay, "loop body shorter than first iteration"
            self._replay = None

    def _waits(self):
        need = {}
        for _pass in range(4):
            changed = False
            vm, lg = [], []

            def apply(w):
                if w[0] is not None:
                    del vm[: max(0, len(vm) - w[0])]
                if w[1] is not None:
                    if w[1] == 0:
                        del lg[:]
                    elif not any(o.kind == "smem" for o in lg):
                        del lg[: max(0, len(lg) - w[1])]

            def require(pos, which, cnt):
                nonlocal changed
                cnt = min(cnt, 63 if which == 0 else 15)
                w = need.setdefault(pos, [None, None])
                if w[which] is None or cnt < w[which]:
                    w[which] = cnt
                    changed = True

            def cover(q, which, pred, pos):
                idx = [i for i, o in enumerate(q) if pred(o)]
                if idx:
                    cnt = len(q) - 1 - idx[-1]
                    if which == 1 and any(o.kind == "smem" for o in q):
                        cnt = 0
                    require(pos, which, cnt)

            for ins in self.trace:
                if ins.kind == "meta":
                    continue
                if ins.kind == "wait":
                    apply(ins.wait)
                    continue
                if ins.pos in need:
                    apply(need[ins.pos])
                if ins.kind == "symwait":
                    cover(vm, 0, lambda o: o.tag in ins.tags, ins.pos)
                    cover(lg, 1, lambda o: o.tag in ins.tags, ins.pos)
                else:
                    touched = set(ins.rd) | set(ins.wr)
                    t_vm = set(ins.rd) if ins.kind == "vld" else touched
                    t_lg = set(ins.rd) if ins.kind == "dsr" else touched
                    cover(vm, 0, lambda o: t_vm & set(o.wr), ins.pos)
                    cover(lg, 1, lambda o: t_lg & set(o.wr), ins.pos)
                if ins.pos in need:
                    apply(need[ins.pos])
                if ins.kind in ("vld", "vst", "dma"):
                    vm.append(ins)
                elif ins.kind in ("dsr", "dsw", "smem"):
                    lg.append(ins)
            if not changed:
                break
        return need

    @staticmethod
    def _hazard(p, c):
        n = 0
        pw = set(p.wr)
        crd, cwr = set(c.rd), set(c.wr)
        isv = lambda k: k in ("valu", "trans")
        vec = lambda s: {r for r in s if r[0] in "va"}
        sc = lambda s: {r for r in s if r[0] == "s" or r == ("x", "vcc")}
        if isv(p.kind):
            if c.kind == "mfma" and vec(pw) & crd:
                n = max(n, 2)
            if isv(c.kind):
                if (c.dpp or "permlane" in c.mn) and vec(pw) & crd:
                    n = max(n, 2)
                if c.mn.startswith(("v_readlane", "v_readfirstlane")) and vec(pw) & crd:
                    n = max(n, 1)
                if p.kind == "trans" and c.kind != "trans" and vec(pw) & crd:
                    n = max(n, 1)
                if sc(pw) & crd or (("x", "vcc") in pw and c.mn.startswith("v_cndmask")):
                    n = max(n, 4 if c.mn.startswith(("v_readlane", "v_writelane")) else 2)
                if "sdwa" in p.mn and vec(pw) & (crd | cwr):
                    n = max(n, 1)
                if ("x", "exec") in pw:
                    n = max(n, 5)
            if c.kind == "mfma" and ("x", "exec") in pw:
                n = max(n, 4)
            if c.kind in ("vld", "vst", "dma") and sc(pw) & crd:
                n = max(n, 5)
            if c.kind in ("salu", "ctl") and (sc(pw) & crd or (("x", "vcc") in pw and "vcc" in c.mn)):
                n = max(n, 2)
        if p.kind == "salu" and ("x", "m0") in pw and c.kind == "dma":
            n = max(n, 1)
        if p.kind == "mfma":
            big = p.passes == 8
            if c.kind == "mfma":
                if pw & set(c.srcab):
                    n = max(n, 12 if big else 8)
                if pw & set(c.srcc):
                    if not (p.wr == c.srcc and p.passes == c.passes):
                        n = max(n, 10 if big else 6)
                elif pw & cwr:
                    n = max(n, 10 if big else 6)
            elif c.kind in ("valu", "trans", "vld", "vst", "dma", "dsr", "dsw"):
                if pw & (crd | cwr):
                    n = max(n, 12 if big else 8)
                if isv(c.kind) and set(p.srcc) & cwr:
                    n = max(n, 7 if big else 3)
        if p.kind == "vst" and p.wide and set(p.srcab) & cwr:
            n = max(n, 2)
        return n

    def _nops(self, need):
        pad = {}
        for _pass in range(3):
            changed = False
            hist = []
            for ins in self.trace:
                if ins.kind == "meta":
                    continue
                w = need.get(ins.pos)
                haswait = w is not None and (w[0] is not None or w[1] is not None)
                if ins.kind == "symwait":
                    if haswait:
                        hist.append((None, 1))
                    continue
                if haswait:
                    hist.append((None, 1))
                req = 0
                d = 0
                for p, st in reversed(hist):
                    if p is not None:
                        h = self._hazard(p, ins)
                        req = max(req, h - d)
                    d += st
                    if d >= 20:
                        break
                if req > pad.get(ins.pos, 0):
                    pad[ins.pos] = req
                    changed = True
                if pad.get(ins.pos, 0):
                    hist.append((None, pad[ins.pos]))
                st = 1
                if ins.kind == "nop":
                    st = int(ins.text.split()[1]) + 1
                hist.append((ins, st))
                if len(hist) > 64:
                    del hist[:32]
            if not changed:
                break
        return pad

    def text(self):
        need = self._waits()
        for a, b in zip(self.static, self.static[1:]):
            if a.kind == "symwait" and a.pos in need and b.kind not in ("meta", "wait") and b.pos in need:
                wa, wb = need.pop(a.pos), need[b.pos]
                for i in range(2):
                    if wa[i] is not None:
                        wb[i] = wa[i] if wb[i] is None else min(wa[i], wb[i])
        pad = self._nops(need)
        out = []
        self.n_nops = 0
        for ins in self.static:
            w = need.get(ins.pos)
            if w is not None and (w[0] is not None or w[1] is not None):
                s = "s_waitcnt"
                if w[0] is not None:
                    s += f" vmcnt({w[0]})"
                if w[1] is not None:
                    s += f" lgkmcnt({w[1]})"
                out.append("    " + s)
            if ins.kind == "symwait":
                continue
            p = pad.get(ins.pos, 0)
            if p:
                out.append(f"    s_nop {p - 1}")
                self.n_nops += 1
            out.append(ins.text if ins.kind == "meta" else "    " + ins.text)
        return "\n".join(out) + "\n"


def descriptor(name, vgpr, accum, sgpr=102):
    return f""".amdhsa_kernel {name}
  .amdhsa_next_free_vgpr {vgpr}
  .amdhsa_next_free_sgpr {sgpr}
  .amdhsa_accum_offset {accum}
  .amdhsa_group_segment_fixed_size 0
  .amdhsa_kernarg_size 80
  .amdhsa_user_sgpr_count 2
  .amdhsa_user_sgpr_kernarg_segment_ptr 1
  .amdhsa_system_sgpr_workgroup_id_x 1
  .amdhsa_float_denorm_mode_32 3
.end_amdhsa_kernel
"""
```

```python
import struct
import sys
from asmlib import Kernel, descriptor

NAME = "sequential_preLN__softmax_full_mha__glu_gated_swiglu__prompt"
WS_XN, WS_KV, WS_O, WS_HC, WS_ACT = 0x0, 0x800000, 0x1000000, 0x1400000, 0x1800000
WS_MEANX, WS_WBAR, WS_VARP, WS_CNT = 0x2600000, 0x2602000, 0x2608000, 0x2640000
WS_STAMP = 0x2700000
WS_SIZE = 0x2800000
OOB = 0x40000000
LOG2E = 1.4426950408889634
LDS_X = 131072
LDS_WBAR = LDS_X + 16384
SPIN = 400000
OPT = dict(stamps=False)


def f32(x):
    return "0x%08x" % struct.unpack("<I", struct.pack("<f", x))[0]


def vr(b, n=1, c="v"):
    return f"{c}{b}" if n == 1 else f"{c}[{b}:{b + n - 1}]"


def ar(b, n=1):
    return vr(b, n, "a")


S_WS, S_A, S_W, S_DBG = "s[4:7]", "s[8:11]", "s[12:15]", "s[56:59]"
S_WAVE = "s16"
S_RB, S_HP, S_RB3, S_CB3, S_RB4, S_CB4 = "s17", "s18", "s60", "s61", "s62", "s63"
S_WV4K = "s19"
S_WSLOT, S_WSOFF, S_XK, S_XSOFF, S_RD, S_DELTA, S_CNT, S_WEND = "s20", "s21", "s22", "s23", "s24", "s25", "s26", "s27"
S_KARG = 36
S_MSK = "s64"
S_SLOT = "s65"
S_STAMP = 68


def srd(k, dst, slot, size):
    k(f"""s_mov_b32 s{dst}, s{S_KARG + 2 * slot}
    s_mov_b32 s{dst + 1}, s{S_KARG + 2 * slot + 1}
    s_mov_b32 s{dst + 2}, {hex(size)}
    s_mov_b32 s{dst + 3}, 0x20000""")


def kptr(slot):
    return f"s[{S_KARG + 2 * slot}:{S_KARG + 2 * slot + 1}]"


def stamp(k, name, clk=False, grp=0):
    det = OPT.get("detail", 0)
    if grp and grp != det:
        return
    clk = clk and not det
    if OPT["stamps"]:
        i = len(k.stamps)
        k.stamps.append(name)
        k("s_memrealtime s[100:101]")
        if clk:
            k.stamps.append("clk")
            k("s_memtime s[98:99]")
        k("s_waitcnt lgkmcnt(0)")
        k(f"s_mov_b32 s{S_STAMP + i}, s100")
        if clk:
            k(f"s_mov_b32 s{S_STAMP + i + 1}, s98")
        assert S_STAMP + len(k.stamps) <= 98


def emit(k, items):
    for it in items:
        if callable(it):
            it()
        elif isinstance(it, str):
            k(it)
        elif it[0] == "WAIT":
            k.wait(*it[1:])
        else:
            k(it[0], it[1])


def dpp_sum16(k, v):
    for m in ("quad_perm:[1,0,3,2]", "quad_perm:[2,3,0,1]", "row_half_mirror", "row_mirror"):
        k(f"v_add_f32_dpp {v}, {v}, {v} {m} row_mask:0xf bank_mask:0xf")


def swap_sum(k, v, t, which, op="v_add_f32"):
    k(f"""v_mov_b32 {t}, {v}
    v_permlane{which}_swap_b32 {v}, {t}
    {op} {v}, {v}, {t}""")


def pack_pair(d, a0, a1):
    return [f"v_cvt_pk_bf16_f32 v{d}, v{a0}, v{a0 + 1}",
            f"v_cvt_pk_bf16_f32 v{d + 1}, v{a0 + 2}, v{a0 + 3}",
            f"v_cvt_pk_bf16_f32 v{d + 2}, v{a1}, v{a1 + 1}",
            f"v_cvt_pk_bf16_f32 v{d + 3}, v{a1 + 2}, v{a1 + 3}"]


def swap_pair(d, which=16):
    return [f"v_permlane{which}_swap_b32 v{d}, v{d + 2}", f"v_permlane{which}_swap_b32 v{d + 1}, v{d + 3}"]


def zero(k, base, n):
    for i in range(n):
        k(f"v_mov_b32 v{base + i}, 0")


def lane_terms(k, vi4, vg, vf):
    k(f"""v_bfe_u32 {vi4}, v0, 2, 2
    v_lshrrev_b32 {vg}, 4, v0
    v_and_b32 {vf}, 2, {vi4}
    v_and_or_b32 {vf}, {vg}, 1, {vf}""")


def dma_voff8(k, dst, tmp, rowstride, s_base, consts):
    k(f"""v_lshrrev_b32 {tmp[0]}, 3, v0
    v_and_b32 {tmp[1]}, 2, {tmp[0]}
    v_lshlrev_b32 {tmp[1]}, 1, {tmp[1]}
    v_and_b32 {tmp[2]}, 7, v0
    v_xor_b32 {tmp[1]}, {tmp[1]}, {tmp[2]}
    v_mul_u32_u24 {tmp[0]}, {rowstride}, {tmp[0]}
    v_add_u32 {tmp[0]}, {s_base}, {tmp[0]}
    v_xor_b32 {tmp[2]}, 2, {tmp[1]}
    v_lshl_add_u32 {tmp[1]}, {tmp[1]}, 4, {tmp[0]}
    v_lshl_add_u32 {tmp[2]}, {tmp[2]}, 4, {tmp[0]}""")
    for d, (bit3, const) in zip(dst, consts):
        k(f"v_add_u32 {d}, {const}, {tmp[1 + bit3]}")


def narrow_raddr(k, dst, tmp):
    lane_terms(k, tmp[0], tmp[1], tmp[2])
    k(f"""v_lshlrev_b32 {tmp[1]}, 10, {tmp[1]}
    v_lshl_add_u32 {tmp[1]}, {tmp[0]}, 7, {tmp[1]}
    v_and_b32 {tmp[0]}, 3, v0
    v_lshl_add_u32 {tmp[1]}, {tmp[0]}, 3, {tmp[1]}""")
    for j in range(4):
        k(f"""v_xor_b32 {tmp[0]}, {j}, {tmp[2]}
        v_lshl_add_u32 {dst[j]}, {tmp[0]}, 5, {tmp[1]}""")


def t16_pair_addr(k, dst, tmp, tbstride):
    k(f"""v_bfe_u32 {dst}, v0, 4, 1
    v_mul_u32_u24 {dst}, {tbstride}, {dst}
    v_lshrrev_b32 {tmp}, 5, v0
    v_lshl_add_u32 {dst}, {tmp}, 8, {dst}
    v_and_b32 {tmp}, 15, v0
    v_lshl_add_u32 {dst}, {tmp}, 4, {dst}""")


def rowmajor_pair_addr(k, dst, tmp):
    k(f"""v_and_b32 {dst}, 31, v0
    v_lshlrev_b32 {dst}, 11, {dst}
    v_lshrrev_b32 {tmp}, 5, v0
    v_lshl_add_u32 {dst}, {tmp}, 4, {dst}""")


def arrive(k, vone, vzero, sr, soff, guard=None):
    def go():
        skip = k.label("arrived")
        k(f"""s_cmp_lg_u32 {S_WAVE}, 0
        s_cbranch_scc1 {skip}""")
        if guard:
            guard()
        k.raw("s_mov_b64 exec, 1")
        k.raw(f"buffer_atomic_add {vone}, {vzero}, {sr}, {soff} offen sc1")
        k.raw("s_mov_b64 exec, -1")
        k(f"{skip}:")
    return go


def spin(k, vtmp, voff, sr, soff, target, lanes=1):
    top, out = k.label("spin"), k.label("spun")
    k(f"""s_mov_b32 s67, {SPIN}
    s_mov_b64 exec, {hex((1 << lanes) - 1)}
    {top}:
    buffer_load_dword {vtmp}, {voff}, {sr}, {soff} offen sc1
    s_waitcnt vmcnt(0)
    v_cmp_gt_u32 vcc, {target}, {vtmp}
    s_cbranch_vccz {out}
    s_sleep {OPT.get('sleep', 2)}
    s_sub_u32 s67, s67, 1
    s_cmp_lg_u32 s67, 0
    s_cbranch_scc1 {top}
    {out}:
    s_mov_b64 exec, -1""")


def check_or_spin(k, vtmp, voff, sr, soff, target, lanes=1):
    lab, back = k.label("poll"), k.label("polled")
    k(f"""v_cmp_gt_u32 vcc, {target}, {vtmp}
    s_cbranch_vccnz {lab}
    {back}:""")

    def cold():
        k(f"{lab}:")
        spin(k, vtmp, voff, sr, soff, target, lanes)
        k(f"s_branch {back}")
    k.cold.append(cold)


def wg_wait(k, vtmp, vzero, sr, soff, target):
    lab, back = k.label("poll"), k.label("polled")
    k(f"""s_cmp_eq_u32 {S_WAVE}, 0
    s_cbranch_scc1 {lab}
    {back}:
    s_barrier""")

    def cold():
        k(f"{lab}:")
        spin(k, vtmp, vzero, sr, soff, target)
        k(f"s_branch {back}")
    k.cold.append(cold)


def cnt(group):
    return WS_CNT + 256 * (0, 16, 32, 48, 56)[group]


class Frag:
    def __init__(self, reads, mfmas, pre=(), post=(), before=()):
        self.reads, self.mfmas, self.pre, self.post, self.before = list(reads), list(mfmas), list(pre), list(post), list(before)


def run_frags(k, frags, nxt, LA, extra):
    allf = frags + nxt
    n = 0
    for f, fr in enumerate(frags):
        TB = len(fr.mfmas)
        gaps = [[] for _ in range(TB)]
        if f + LA < len(allf):
            la = allf[f + LA]
            gaps[0] += la.pre
            for i, t in enumerate(la.reads):
                gaps[min(i, TB - 1)].append(t)
            gaps[TB - 1] += la.post
        emit(k, fr.before)
        for i, m in enumerate(fr.mfmas):
            k(m)
            emit(k, gaps[i])
            emit(k, extra.pop(n, []))
            n += 1
    assert not extra, extra


def prime(k, frags, LA):
    for fr in frags[:LA]:
        emit(k, fr.pre + fr.reads + fr.post)


def spread(extra, items, gaps):
    gaps = list(gaps)
    for i, it in enumerate(items):
        extra.setdefault(gaps[(i * len(gaps)) // len(items)], []).append(it)


def mf16(d, a, b, c=None):
    return f"v_mfma_f32_16x16x32_bf16 {d}, {a}, {b}, {d if c is None else c}"


def snake(f, TB):
    return range(TB) if f % 2 == 0 else range(TB - 1, -1, -1)


def ring_dma(slot, voffs, sr, soff, tag, flags=""):
    out = [f"s_add_u32 m0, {S_WV4K}, {(slot % 8) * 16384}" if slot % 8 else f"s_mov_b32 m0, {S_WV4K}"]
    for i, v in enumerate(voffs):
        out.append((f"buffer_load_dwordx4 {v}, {sr}, {soff} offen offset:{1024 * i}{flags} lds", tag))
    return out


XOVF = 216
WFR = 216


def xres(i):
    return ar(4 * i, 4) if i < 54 else vr(XOVF + 4 * (i - 54), 4)


def xres_loads(steps, voffs, soff):
    out = []
    for s in steps:
        for tb in range(2):
            out.append((f"buffer_load_dwordx4 {xres(2 * s + tb)}, {voffs[tb]}, {S_WS}, {soff} offen offset:{1024 * (s % 4)} sc1", ("X", s)))
        if s % 4 == 3:
            out.append(f"s_add_u32 {soff}, {soff}, 4096")
    return out


def p_entry(k):
    k(f""".globl {k.name}
.p2align 8
.type {k.name},@function
{k.name}:""")
    k.end = k.label("end")
    k(f"""s_cmp_ge_u32 s2, 256
    s_cbranch_scc1 {k.end}""")
    stamp(k, "start")
    k(f"""s_load_dwordx16 s[{S_KARG}:{S_KARG + 15}], s[0:1], 0
    s_load_dwordx4 s[{S_KARG + 16}:{S_KARG + 19}], s[0:1], 64
    v_lshrrev_b32 v2, 6, v0
    v_and_b32 v0, 63, v0
    v_readfirstlane_b32 {S_WAVE}, v2
    v_lshlrev_b32 v1, 4, v0
    s_and_b32 s28, s2, 1
    s_bfe_u32 s29, s2, 0x20001
    s_lshr_b32 s30, s2, 3
    s_and_b32 s31, s30, 3
    s_lshr_b32 s32, s30, 2
    s_and_b32 s3, s30, 7
    s_lshl3_add_u32 {S_RB}, s28, s3
    s_lshr_b32 s3, s30, 3
    s_lshl2_add_u32 {S_HP}, s29, s3
    s_lshl2_add_u32 {S_RB3}, s29, s31
    s_lshl3_add_u32 {S_CB3}, s28, s32
    s_lshl2_add_u32 {S_RB4}, s28, s31
    s_lshl3_add_u32 {S_CB4}, s29, s32
    s_lshl_b32 {S_WV4K}, {S_WAVE}, 12
    s_mov_b32 {S_MSK}, 0xffff0000""")
    if OPT.get("map18", 1):
        k(f"""s_and_b32 {S_RB}, s30, 15
        s_and_b32 s28, s2, 7
        s_lshr_b32 s3, s30, 4
        s_lshl1_add_u32 {S_HP}, s28, s3""")


def p0_ln(k):
    NT = " nt" if OPT.get("nt", 1) else ""
    k(f"""s_lshl_b32 s33, {S_RB}, 4
    s_add_u32 s33, s33, {S_HP}
    s_lshl_b32 s34, {S_WAVE}, 1
    s_lshl3_add_u32 s35, s33, s34
    v_lshrrev_b32 v2, 5, v0
    v_add_u32 v3, s35, v2
    v_and_b32 v4, 31, v0
    v_lshlrev_b32 v5, 11, v3
    v_lshl_add_u32 v5, v4, 4, v5
    s_lshl2_add_u32 s66, s2, {S_WAVE}
    v_mov_b32 v85, 1
    v_mov_b32 v86, 0
    v_lshlrev_b32 v87, 8, v0""")
    for i in range(4):
        k(f"global_load_dwordx4 {vr(16 + 4 * i, 4)}, v5, {kptr(0)} offset:{512 * i}{NT}", tag="x")
    srd(k, 4, 9, WS_SIZE)
    skip = k.label("nz")
    k(f"""s_mov_b32 s3, {WS_CNT}
    s_cmp_lg_u32 s66, 0
    s_cbranch_scc1 {skip}""")
    k.raw(f"buffer_store_dword v86, v87, {S_WS}, s3 offen sc1")
    k(f"{skip}:")
    srd(k, 12, 1, 1024 * 6144)
    srd(k, 56, 8, 256)
    TCH = OPT.get("touch", 4)
    k(f"""s_getpc_b64 s[28:29]
    L_pc:
    s_lshl2_add_u32 s3, s30, {S_WAVE}
    s_mul_i32 s3, s3, 640
    v_min_u32 v88, 4, v0
    v_lshl_add_u32 v88, v88, 7, s3
    v_min_u32 v88, L_codeend-L_pc-4, v88""")
    if TCH in (1, 2):
        k(f"""s_mul_i32 s3, s66, 6144
        v_min_u32 v15, 47, v0
        v_lshl_add_u32 v15, v15, 7, s3""")
    elif TCH == 3:
        k(f"""s_lshr_b32 s3, s66, 1
        s_mul_i32 s3, s3, 6144
        s_and_b32 s31, s66, 1
        s_lshl_b32 s31, s31, 11
        s_add_u32 s3, s3, s31
        s_add_u32 s3, s3, 2048
        v_and_b32 v15, 15, v0
        v_lshl_add_u32 v15, v15, 7, s3
        v_and_b32 v89, 3, v0
        s_add_u32 s3, s3, {512 * 6144}
        v_lshl_add_u32 v90, v89, 7, s3
        s_mul_i32 s3, s66, 6144
        v_lshl_add_u32 v89, v89, 7, s3""")
    if TCH >= 4 and OPT.get("map18", 1):
        k(f"""s_lshl2_add_u32 s3, s30, {S_WAVE}
        s_mul_i32 s31, s3, {4 * 6144}
        s_mul_i32 s3, s3, {8 * 6144}
        s_and_b32 s32, s2, 7
        s_lshl_b32 s32, s32, 8
        s_add_u32 s31, s31, s32
        s_add_u32 s3, s3, s32
        v_and_b32 v89, 1, v0
        v_lshlrev_b32 v89, 7, v89
        v_bfe_u32 v90, v0, 2, 2
        v_mul_u32_u24 v90, 6144, v90
        v_bfe_u32 v15, v0, 1, 1
        v_lshl_add_u32 v15, v15, 11, v90
        v_add3_u32 v15, v15, v89, s31
        v_add_u32 v15, 2048, v15
        v_bfe_u32 v90, v0, 1, 3
        v_mul_u32_u24 v90, 6144, v90
        v_add3_u32 v89, v90, v89, s3
        v_add_u32 v90, {512 * 6144}, v15""")
    elif TCH >= 4:
        k(f"""s_lshl2_add_u32 s3, s30, {S_WAVE}
        s_mul_i32 s31, s3, {4 * 6144}
        s_mul_i32 s3, s3, {8 * 6144}
        s_bfe_u32 s32, s2, 0x20001
        s_lshl_b32 s32, s32, 9
        s_add_u32 s31, s31, s32
        s_add_u32 s3, s3, s32
        v_and_b32 v89, 3, v0
        v_lshlrev_b32 v89, 7, v89
        v_bfe_u32 v90, v0, 2, 2
        v_mul_u32_u24 v90, 6144, v90
        v_bfe_u32 v15, v0, 4, 1
        v_lshl_add_u32 v15, v15, 11, v90
        v_add3_u32 v15, v15, v89, s31
        v_add_u32 v15, 2048, v15
        v_bfe_u32 v90, v0, 2, 3
        v_mul_u32_u24 v90, 6144, v90
        v_add3_u32 v89, v90, v89, s3
        v_add_u32 v90, {512 * 6144}, v15""")
    touches = [f"global_load_dword v74, v88, s[28:29]", f"global_load_dword v72, v15, {kptr(1)}"]
    B1, B2 = f"global_load_dword v72, v90, {kptr(1)}", f"global_load_dword v72, v89, {kptr(1)}"
    if TCH == 5:
        touches.append(B1)
    if TCH == 6:
        touches += [B1, B2]
    if TCH == 2:
        emit(k, touches)
        touches = []
    if TCH == 8:
        emit(k, touches)
        touches = [B1, B2]
    k(f"""s_lshl_b32 s3, s66, 11
    v_add_u32 v91, s3, v1""")
    k(f"""v_add_u32 v7, s34, v2
    v_and_b32 v8, 7, v0
    v_xor_b32 v7, v7, v8
    v_lshlrev_b32 v7, 4, v7
    v_lshl_add_u32 v7, v4, 7, v7
    v_add_u32 v7, {LDS_X}, v7
    s_lshl_b32 s3, {S_WAVE}, 3
    v_lshrrev_b32 v9, 3, v0
    v_xor_b32 v10, v9, v8
    v_add_u32 v9, s3, v9
    v_lshlrev_b32 v10, 4, v10
    v_lshl_add_u32 v10, v9, 7, v10
    v_add_u32 v10, {LDS_X}, v10
    v_lshlrev_b32 v11, 4, v8
    v_lshl_add_u32 v11, v9, 8, v11
    s_lshr_b32 s34, s33, 1
    s_lshl_b32 s34, s34, 15
    s_and_b32 s3, s33, 1
    s_lshl_b32 s3, s3, 7
    s_add_u32 s34, s34, s3
    v_lshlrev_b32 v3, 2, v3""")
    k(f"""s_mul_i32 s3, {S_WAVE}, {16 * 6144}
    s_lshl_b32 s33, {S_HP}, 7
    s_add_u32 s3, s3, s33""")
    dma_voff8(k, ["v76", "v77", "v78", "v79"], ["v12", "v13", "v14"], 6144, "s3",
              [(i % 2, (i % 2) * 8 * 6144 + (1 + i // 2) * 2048 - i * 1024) for i in range(4)])
    k(f"""s_mul_i32 s3, {S_WAVE}, {32 * 6144}
    s_add_u32 s3, s3, s33""")
    dma_voff8(k, ["v80", "v81", "v82", "v83"], ["v12", "v13", "v14"], 6144, "s3",
              [(i % 2, i * 8 * 6144 - i * 1024) for i in range(4)])
    stamp(k, "setup", grp=1)
    k.wait("x")
    stamp(k, "x loaded", grp=1)
    skip = k.label("nr")
    k(f"""s_cmp_lg_u32 s66, 0
    s_cbranch_scc1 {skip}""")
    k.raw("s_waitcnt vmcnt(0)")
    k.raw("s_mov_b64 exec, 1")
    k.raw(f"buffer_store_dword v85, v86, {S_DBG}, 0 offen sc1")
    k.raw("s_mov_b64 exec, -1")
    k(f"{skip}:")
    emit(k, touches)
    for i in range(16):
        k(f"""v_lshlrev_b32 v{32 + 2 * i}, 16, v{16 + i}
        v_and_b32 v{33 + 2 * i}, {S_MSK}, v{16 + i}""")
    k("v_pk_add_f32 v[12:13], v[32:33], v[34:35]")
    k("v_pk_add_f32 v[14:15], v[36:37], v[38:39]")
    for i in range(4, 16):
        r = vr(12 + 2 * (i % 2), 2)
        k(f"v_pk_add_f32 {r}, {r}, {vr(32 + 2 * i, 2)}")
    k("v_pk_add_f32 v[12:13], v[12:13], v[14:15]")
    k("v_add_f32 v12, v12, v13")
    dpp_sum16(k, "v12")
    swap_sum(k, "v12", "v13", 16)
    k(f"v_mul_f32 v12, {f32(1 / 1024)}, v12")
    for i in range(16):
        k(f"v_pk_add_f32 {vr(32 + 2 * i, 2)}, {vr(32 + 2 * i, 2)}, v[12:13] op_sel_hi:[1,0] neg_lo:[0,1] neg_hi:[0,1]")
    k("v_pk_mul_f32 v[14:15], v[32:33], v[32:33]")
    k("v_pk_mul_f32 v[16:17], v[34:35], v[34:35]")
    for i in range(2, 16):
        r = vr(14 + 2 * (i % 2), 2)
        k(f"v_pk_fma_f32 {r}, {vr(32 + 2 * i, 2)}, {vr(32 + 2 * i, 2)}, {r}")
    k("v_pk_add_f32 v[14:15], v[14:15], v[16:17]")
    k("v_add_f32 v13, v14, v15")
    dpp_sum16(k, "v13")
    swap_sum(k, "v13", "v14", 16)
    k(f"""v_mov_b32 v14, {f32(1e-5)}
    v_fmac_f32 v14, {f32(1 / 1024)}, v13
    v_rsq_f32 v14, v14""")
    for i in range(16):
        k(f"v_pk_mul_f32 {vr(32 + 2 * i, 2)}, {vr(32 + 2 * i, 2)}, v[14:15] op_sel_hi:[1,0]")
        if i % 4 == 3:
            for j in range(i - 3, i + 1):
                k(f"v_cvt_pk_bf16_f32 v{16 + j}, v{32 + 2 * j}, v{33 + 2 * j}")
            k(f"ds_write_b128 v7, {vr(16 + i - 3, 4)} offset:{4096 * (i // 4)}", tag="t")
    k(f"""s_mov_b32 s28, {WS_MEANX}
    s_mov_b32 exec_lo, 1
    s_mov_b32 exec_hi, 1""")
    k(f"buffer_store_dword v12, v3, {S_WS}, s28 offen sc1", tag="pub0")
    k("s_mov_b64 exec, -1")
    k.wait("t")
    stamp(k, "ln done", grp=1)
    k("s_barrier")
    for i in range(4):
        k(f"ds_read_b128 {vr(16 + 4 * i, 4)}, v10 offset:{4096 * i}")
    k(f"buffer_load_dword v84, v86, {S_DBG}, 0 offen sc1")
    for i in range(4):
        k(f"buffer_store_dwordx4 {vr(16 + 4 * i, 4)}, v11, {S_WS}, s34 offen sc1", tag="pub0")
        if i < 3:
            k("s_add_u32 s34, s34, 8192")
    stamp(k, "ln stored")
    k(f"s_mov_b32 {S_WSOFF}, 0")
    if TCH in (4, 7):
        k(B1)
    if TCH == 5:
        k(B2)

    def slot(s):
        emit(k, ring_dma(s, ["v76", "v77", "v78", "v79"], S_W, S_WSOFF, ("R", s)))
        k(f"s_add_u32 {S_WSOFF}, {S_WSOFF}, {64 * 6144}")
    E = OPT.get("early", 2)
    for s in range(E):
        slot(s)
    k(f"""s_lshl_b32 s29, {S_RB}, 8
    s_add_u32 s29, s29, {cnt(0)}""")
    k.wait("pub0")
    stamp(k, "ln drained", grp=1)
    k("s_barrier")
    arrive(k, "v85", "v86", S_WS, "s29", lambda: check_or_spin(k, "v84", "v86", S_DBG, "0", 1))()
    if TCH == 4:
        k(B2)
    for s in range(E, OPT.get("early2", 8)):
        slot(s)


def wbar_items():
    it = []
    for i in range(8):
        it += [f"v_lshlrev_b32 v{32 + 2 * i}, 16, v{64 + i}", f"v_and_b32 v{33 + 2 * i}, {S_MSK}, v{64 + i}"]
    for i in range(1, 16):
        it.append(f"v_add_f32 v32, v32, v{32 + i}")
    for m in ("quad_perm:[1,0,3,2]", "quad_perm:[2,3,0,1]", "row_half_mirror", "row_mirror"):
        it.append(f"v_add_f32_dpp v32, v32, v32 {m} row_mask:0xf bank_mask:0xf")
    for w in (16, 32):
        it += ["v_mov_b32 v33, v32", f"v_permlane{w}_swap_b32 v32, v33", "v_add_f32 v32, v32, v33"]
    it += [f"v_mul_f32 v32, {f32(1 / 1024)}, v32", "v_cvt_pk_bf16_f32 v33, v32, v32", f"v_and_b32 v34, {S_MSK}, v33",
           "v_sub_f32 v34, v32, v34", "v_cvt_pk_bf16_f32 v34, v34, v34",
           f"s_lshl_b32 s28, s66, 1\ns_add_u32 s28, s28, {WS_WBAR}"]
    return it


A_Q, A_NEG, A_S, A_P, A_O, A_L, A_SEL, A_IDX = [16, 24], [32, 48], [64, 80], [96, 104], [112, 128], [144, 148], 152, 156
A_KF, A_VF = [0, 8], [16, 24]
S_KVB, S_KVO, S_KVS, S_KVM = "s31", "s30", "s22", "s24"


def kv_dma(m0, voffs, tag):
    out = [m0]
    for i, v in enumerate(voffs):
        out.append((f"buffer_load_dwordx4 {v}, {S_A}, {S_WSOFF} offen offset:{1024 * i} sc1 lds", tag))
    out += [f"s_add_u32 {S_KVO}, {S_KVO}, {S_KVS}", f"s_and_b32 {S_KVO}, {S_KVO}, {S_KVM}", f"s_add_u32 {S_WSOFF}, {S_KVB}, {S_KVO}"]
    return out


def m0_slot(slot, base=S_WV4K):
    return f"s_add_u32 m0, {base}, {slot * 16384}" if slot else f"s_mov_b32 m0, {base}"


def p1_qkv(k):
    ACC = 96
    QACC = 160
    RA = [f"v{4 + j}" for j in range(8)]
    RB = [f"v{12 + j}" for j in range(8)]
    k(f"""s_lshl_b32 s3, {S_RB}, 2
    s_add_u32 s33, s3, {S_WAVE}
    s_lshl_b32 s3, s33, 16
    v_add_u32 v2, s3, v1
    v_add_u32 v3, 0x8000, v2
    s_mov_b32 {S_XSOFF}, {WS_XN}""")
    narrow_raddr(k, RB, ["v20", "v21", "v22"])
    k(f"""v_lshrrev_b32 v20, 5, v0
    v_lshlrev_b32 v20, 11, v20""")
    for j in range(4):
        k(f"""v_add_u32 {RA[j]}, v20, {RB[j]}
        v_add_u32 {RB[4 + j]}, 0x10000, {RB[j]}
        v_add_u32 {RA[4 + j]}, 0x10000, {RA[j]}""")
    k(f"""v_and_b32 v21, 0x33, v0
    v_bfe_u32 v20, v0, 2, 1
    v_lshl_or_b32 v21, v20, 3, v21
    v_bfe_u32 v20, v0, 3, 1
    v_lshl_or_b32 v21, v20, 2, v21
    v_lshlrev_b32 v21, 4, v21
    s_lshl_b32 s3, {S_HP}, 7
    s_add_u32 s33, s33, s3
    s_lshl_b32 s33, s33, 12
    s_add_u32 s33, s33, {WS_KV}
    s_add_u32 s34, s33, {64 * 4096}
    s_lshl_b32 s32, {S_HP}, 8
    s_add_u32 s32, s32, {cnt(1)}""")
    k(f"""s_lshr_b32 s3, {S_WAVE}, 1
    s_lshl1_add_u32 s35, {S_HP}, s3
    s_lshl_b32 {S_KVB}, s35, 18
    s_and_b32 s3, {S_WAVE}, 1
    s_lshl_b32 s3, s3, 12
    s_add_u32 {S_KVB}, {S_KVB}, s3
    s_add_u32 {S_KVB}, {S_KVB}, {WS_KV}
    s_lshl_b32 {S_KVO}, {S_RB}, 14
    s_mov_b32 {S_KVS}, 8192
    s_mov_b32 {S_KVM}, 0x3ffff""")
    srd(k, 8, 9, WS_SIZE)
    k(f"""s_lshl_b32 s3, {S_WAVE}, 16
    s_lshl_b32 s28, {S_CB3}, 7
    s_add_u32 s3, s3, s28""")
    dma_voff8(k, ["v192", "v193", "v194", "v195"], ["v22", "v23", "v24"], 2048, "s3", [(i % 2, i * 8 * 2048 - i * 1024) for i in range(4)])
    for i in range(4):
        k(f"v_mov_b32 v{196 + i}, v1")
    t16_pair_addr(k, "v200", "v22", 32768)
    k(f"""v_min_u32 v201, 6, v0
    s_mul_i32 s3, s66, 7168
    v_lshl_add_u32 v201, v201, 7, s3
    s_lshr_b32 s28, {S_WAVE}, 1
    s_lshl_b32 s3, s28, 13
    v_add_u32 v202, s3, v1
    s_lshl_b32 s28, s28, 11
    s_and_b32 s3, {S_WAVE}, 1
    s_lshl_b32 s3, s3, 13
    s_add_u32 s3, s3, s28
    s_add_u32 s3, s3, {LDS_X}
    v_add_u32 v203, s3, v1
    v_add_u32 v22, {S_WV4K}, v1
    v_add_u32 v22, {LDS_X}, v22""")
    k(f"""v_mov_b32 v23, 0x3f803f80
    v_and_b32 v24, 6, v0
    v_cmp_eq_u32 vcc, 0, v24
    v_cndmask_b32 v204, 0, v23, vcc
    v_cmp_eq_u32 vcc, 4, v24
    v_cndmask_b32 v205, 0, v23, vcc
    v_and_b32 v24, 1, v0
    v_mul_u32_u24 v24, 0xaaaa, v24
    v_add_u32 v206, 0x4444, v24""")
    stamp(k, "dma issued", grp=1)
    wg_wait(k, "v20", "v86", S_WS, "s29", 16)
    stamp(k, "s0 done")
    emit(k, xres_loads(range(4), ["v2", "v3"], S_XSOFF))
    NWF, LA = 10, 5
    BS = OPT.get("qkvbar", 1)
    frags = []
    g = 0

    def gate(sl):
        return [("WAIT",) + tuple(("R", sl + i) for i in range(BS)), "s_barrier"] if sl % BS == 0 else []
    for sl in range(16):
        for t in range(2):
            for nb in range(8):
                r = WFR + 4 * (g % NWF)
                off = (sl % 4) * 16384 + t * 8192 + (nb // 4) * 2048
                a = RA[4 * ((sl % 8) // 4) + nb % 4]
                rd = [f"ds_read_b64_tr_b16 {ar(r + 2 * i, 2)}, {a} offset:{off + 512 * i}" for i in range(2)]
                mf = []
                for tb in snake(g, 2):
                    x, w, d = xres(2 * (2 * sl + t) + tb), ar(r, 4), vr(ACC + 4 * (tb * 8 + nb), 4)
                    c = "0" if sl == 0 and t == 0 else None
                    mf.append(mf16(d, x, w, c) if nb >= 4 else mf16(d, w, x, c))
                pre = gate(sl) if t == 0 and nb == 0 else []
                bef = [("WAIT", ("X", 2 * sl + t))] if nb == 0 else []
                frags.append(Frag(rd, mf, pre, before=bef))
                g += 1
    for sl in range(16, 24):
        for t in range(4):
            for nb in range(4):
                r = WFR + 4 * (g % NWF)
                off = (sl % 4) * 16384 + t * 4096
                a = RB[4 * ((sl % 8) // 4) + nb]
                rd = [f"ds_read_b64_tr_b16 {ar(r + 2 * i, 2)}, {a} offset:{off + 512 * i}" for i in range(2)]
                mf = []
                for tb in snake(g, 2):
                    c = "0" if sl == 16 and t == 0 else None
                    mf.append(mf16(vr(QACC + 4 * (tb * 4 + nb), 4), ar(r, 4), xres(2 * (4 * (sl - 16) + t) + tb), c))
                pre = gate(sl) if t == 0 and nb == 0 else []
                frags.append(Frag(rd, mf, pre))
                g += 1
    extra = {}
    nxt = OPT.get("early2", 8)
    for sl in range(24):
        items = []
        n = nxt
        if n <= sl + min(7 - BS, OPT.get('wd', 7) if sl < 12 else 7) and n < 24:
            nxt += 1
            if n < 16:
                items += ring_dma(n, ["v76", "v77", "v78", "v79"], S_W, S_WSOFF, ("R", n))
                items.append(f"s_add_u32 {S_WSOFF}, {S_WSOFF}, {64 * 6144}" if n < 15 else f"s_mov_b32 {S_WSOFF}, 0")
            else:
                items += ring_dma(n, ["v80", "v81", "v82", "v83"], S_W, S_WSOFF, ("R", n))
                items.append(f"s_add_u32 {S_WSOFF}, {S_WSOFF}, {128 * 6144}" if n < 23 else f"s_add_u32 {S_WSOFF}, {S_KVB}, {S_KVO}")
        xs = range(4 + 4 * sl, 8 + 4 * sl) if sl < 2 else [q for q in (2 * sl + 8, 2 * sl + 9) if q < 32]
        items = xres_loads(xs, ["v2", "v3"], S_XSOFF) + items
        if OPT.get("touch", 4) == 3 and sl < 4:
            items.append(f"global_load_dword v72, v90, {kptr(1)} offset:{512 * ((2 * sl) % 4)}" if sl < 2 else f"global_load_dword v72, v89, {kptr(1)} offset:{512 * ((2 * sl) % 4)}")
            items.append(f"global_load_dword v72, v90, {kptr(1)} offset:{512 * ((2 * sl + 1) % 4)}" if sl < 2 else f"global_load_dword v72, v89, {kptr(1)} offset:{512 * ((2 * sl + 1) % 4)}")
        if OPT.get("touch", 4) == 7 and sl == 1:
            items.append(f"global_load_dword v72, v89, {kptr(1)}")
        if sl == 11:
            items += [f"global_load_dwordx4 {vr(64 + 4 * i, 4)}, v91, {kptr(2)} offset:{1024 * i}" for i in range(2)]
        if items:
            spread(extra, items, range(32 * sl, 32 * sl + 32, 2))
    assert nxt == 24

    def wbar_store():
        k("s_mov_b64 exec, 1")
        k(f"buffer_store_short v33, v86, {S_WS}, s28 offen sc1", tag="pub1")
        k(f"buffer_store_short v34, v86, {S_WS}, s28 offen offset:2048 sc1", tag="pub1")
        k("s_mov_b64 exec, -1")
    items = wbar_items() + [wbar_store]
    spread(extra, items, range(32 * 14 + 8, 32 * 14 + 8 + len(items)))
    a = lambda tb, nb: ACC + 4 * (tb * 8 + nb)
    items = []
    d = 32
    for h in range(2):
        for F in range(2):
            items += pack_pair(d, a(0, 2 * h + F), a(1, 2 * h + F))
            items += pack_pair(d + 4, a(F, 4 + 2 * h), a(F, 5 + 2 * h))
            items += swap_pair(d) + swap_pair(d + 4)
            items.append((f"buffer_store_dwordx4 {vr(d, 4)}, v21, {S_WS}, {('s33', 's34')[h]} offen offset:{1024 * F} sc1", "pub1"))
            items.append((f"buffer_store_dwordx4 {vr(d + 4, 4)}, v1, {S_WS}, {('s33', 's34')[h]} offen offset:{2048 + 1024 * F} sc1", "pub1"))
            d += 8
    spread(extra, items, range(32 * 16 + 4, 32 * 16 + 4 + len(items)))
    items = [f"v_mov_b32 v{i}, 0" for i in range(A_P[1], A_L[1] + 4)]
    items += [f"v_mov_b32 v{A_SEL + i}, v{204 + i // 2}" for i in range(4)] + [f"v_mov_b32 v{A_IDX}, v206"]
    items += [f"v_accvgpr_write_b32 a{A_VF[1] + i}, 0" for i in range(8)]
    spread(extra, items, range(32 * 18, 32 * 18 + 2 * len(items), 2))
    ARR = OPT.get("arr1", 21 if BS == 1 else 20)
    fr = frags[16 * ARR]
    fr.pre = [fr.pre[0] + ("pub1",), "s_barrier"]
    fr.post = [arrive(k, "v85", "v86", S_WS, "s32")]
    DV = [f"v{196 + i}" for i in range(4)]
    spread(extra, kv_dma(m0_slot(0), DV, ("KV", 0)) + kv_dma(m0_slot(1), DV, ("KV", 0)), range(32 * ARR + 1, 32 * ARR + 49, 2))
    extra.setdefault(32 * 23 + OPT.get("poll1", 20), []).append((f"buffer_load_dword v207, v86, {S_WS}, s32 offen sc1", None))
    prime(k, frags, LA)
    stamp(k, "qkv go", True)
    run_frags(k, frags, [], LA, extra)
    stamp(k, "qkv done", True)
    k(f"s_mov_b32 s28, {f32(32 ** -0.5 * LOG2E)}")
    for nb in range(4):
        for tb in range(2):
            for h in (0, 2):
                r = vr(QACC + 4 * (tb * 4 + nb) + h, 2)
                k(f"v_pk_mul_f32 {r}, {r}, s[28:29] op_sel_hi:[1,0]")
        emit(k, pack_pair(64 + 4 * nb, QACC + 4 * nb, QACC + 16 + 4 * nb))
    for nb in range(4):
        emit(k, swap_pair(64 + 4 * nb))
        k(f"ds_write_b128 v22, {vr(64 + 4 * nb, 4)} offset:{1024 * nb}", tag="q")


def p2_attn(k):
    Q, NEG, S, P, O, L, SEL, IDX, KF, VF = A_Q, A_NEG, A_S, A_P, A_O, A_L, A_SEL, A_IDX, A_KF, A_VF
    DV = [f"v{196 + i}" for i in range(4)]
    WV = [f"v{192 + i}" for i in range(4)]
    VO, VT, VR, VQ = "v200", "v201", "v202", "v203"
    S_M0 = "s29"

    def mm(d, a, b, c):
        return f"v_mfma_f32_32x32x16_bf16 {vr(d, 16)}, {a}, {b}, {c}"

    def rowsum(q):
        return f"v_smfmac_f32_16x16x64_bf16 {vr(L[q], 4)}, {vr(SEL, 4)}, {vr(P[q], 8)}, v{IDX}"

    def rd(base, n, what, tag):
        off = ((n // 2) % 4) * 16384 + (n % 2) * 4096 + what
        return [(f"ds_read_b128 {ar(base + 4 * i, 4)}, {VR} offset:{off + 1024 * i}", tag) for i in range(2)]
    k.wait("q", ("KV", 0))
    k("s_barrier")
    emit(k, rd(KF[0], 0, 0, None))
    for q in range(2):
        for i in range(2):
            k(f"ds_read_b128 {vr(Q[q] + 4 * i, 4)}, {VQ} offset:{4096 * q + 1024 * i}")
    emit(k, rd(VF[0], 0, 2048, None))
    check_or_spin(k, "v207", "v86", S_WS, "s32", 16)
    stamp(k, "s1 done")
    dm = kv_dma(m0_slot(2), DV, ("KV", 1)) + kv_dma(m0_slot(3), DV, ("KV", 1))
    emit(k, dm[:8])
    for q in range(2):
        k(mm(S[q], ar(KF[0], 4), vr(Q[q], 4), "0"))
        k(mm(S[q], ar(KF[0] + 4, 4), vr(Q[q] + 4, 4), vr(S[q], 16)))
    emit(k, dm[8:])
    k(f"""s_and_b32 s3, {S_WAVE}, 1
    s_lshl1_add_u32 s3, {S_RB}, s3
    s_lshl_b32 s33, s3, 17
    s_lshl_b32 s3, s35, 10
    s_add_u32 s33, s33, s3
    s_add_u32 s33, s33, {WS_O}
    s_add_u32 s34, s33, 0x10000
    s_add_u32 {S_M0}, {S_WV4K}, 0x10000""")
    for q in range(2):
        s = S[q]
        k(f"v_max3_f32 v6, v{s}, v{s + 1}, v{s + 2}")
        k(f"v_max3_f32 v7, v{s + 3}, v{s + 4}, v{s + 5}")
        for i in range(6, 14, 4):
            k(f"v_max3_f32 v6, v6, v{s + i}, v{s + i + 1}")
            k(f"v_max3_f32 v7, v7, v{s + i + 2}, v{s + i + 3}")
        k(f"v_max3_f32 v6, v6, v{s + 14}, v{s + 15}")
        k(f"v_max_f32 v6, v6, v7")
        swap_sum(k, "v6", "v7", 32, "v_max_f32")
        for i in range(0, 16, 2):
            k(f"v_pk_mul_f32 {vr(NEG[q] + i, 2)}, v[6:7], -1.0 op_sel_hi:[0,0]")
        if q == 0:
            for i in range(0, 16, 2):
                k(f"v_pk_add_f32 {vr(S[0] + i, 2)}, {vr(S[0] + i, 2)}, {vr(NEG[0], 2)}")
    stamp(k, "attn go", True)

    def half(q, kbuf, vbuf, fill):
        o = 1 - q
        mf = [mm(S[o], ar(KF[kbuf], 4), vr(Q[o], 4), vr(NEG[o], 16)),
              mm(S[o], ar(KF[kbuf] + 4, 4), vr(Q[o] + 4, 4), vr(S[o], 16)),
              mm(O[o], ar(VF[vbuf], 4), vr(P[o], 4), vr(O[o], 16)),
              mm(O[o], ar(VF[vbuf] + 4, 4), vr(P[o] + 4, 4), vr(O[o], 16)),
              rowsum(o)]
        e = lambda i: f"v_exp_f32 v{S[q] + i}, v{S[q] + i}"
        c = lambda i: f"v_cvt_pk_bf16_f32 v{P[q] + i}, v{S[q] + 2 * i}, v{S[q] + 2 * i + 1}"
        order = [0, 1, 4, 2, 3]
        va = [[e(0), e(1), e(2), c(0)], [e(3), e(4), c(1), e(5), e(6)], [c(2), e(7), e(8), c(3)],
              [e(9), e(10), c(4), e(11), e(12)], [c(5), e(13), e(14), e(15), c(6), c(7)]]
        for i in range(5):
            k(mf[order[i]])
            emit(k, fill[i])
            emit(k, va[i])

    sw, swb = k.label("switch"), k.label("switched")

    def body(it):
        for n in range(8):
            st = it * 2 + n // 4
            kb = n % 2
            rk = rd(KF[1 - kb], n + 1, 0, ("K", it, n))
            rv = rd(VF[1 - kb], n + 1, 2048, ("V", it, n))
            f0 = [[rk[0]], [], [rk[1]], [], [("WAIT", ("K", it, n))]]
            f1 = [[rv[0]], [], [rv[1]], [], []]
            if n % 4 == 3:
                f0 = [[("WAIT", ("KV", st + 1))], ["s_barrier"], [rk[0], rk[1]], [], [("WAIT", ("K", it, n))]]
                if n == 7:
                    f0[1].append(f"v_xor_b32 {VR}, 0x10000, {VR}")
                    f0[3] = [f"s_xor_b32 {S_M0}, {S_M0}, 0x10000"]
                    f1[1] = [f"s_cmp_eq_u32 {S_CNT}, 2"]
                    f1[3] = [f"s_cbranch_scc1 {sw}", f"{swb}:"]
                else:
                    f1[3] = [f"v_add_u32 {VT}, 896, {VT}"]
            if n % 4 < 2:
                dm = kv_dma(m0_slot(2 * (n // 4) + n % 4, S_M0), DV, ("KV", st + 2))
                f0[0].insert(0, dm[0])
                f0[1] = [dm[1]]
                f0[3] = [dm[2]]
                f1[1] = [dm[3]]
                f1[3] = [dm[4]]
                f0[2].insert(0, dm[5])
                f1[2].insert(0, dm[6])
                f1[4] = [dm[7]]
            if n == 2:
                f0[1] = [f"global_load_dword v7, {VT}, {kptr(4)}"]
                f0[3] = [f"global_load_dword v7, {VT}, {kptr(5)}"]
                f1[1] = [f"global_load_dword v7, {VT}, {kptr(6)}"]
            half(0, kb, 1 - kb, f0)
            half(1, 1 - kb, kb, f1)
    k("s_waitcnt lgkmcnt(0)")
    k.loop(8, body, S_CNT)

    def cold():
        k(f"{sw}:")
        srd(k, 8, 2, 1024 * 2048)
        for a, b in zip(DV, WV):
            k(f"v_mov_b32 {a}, {b}")
        k(f"""s_mov_b32 {S_WSOFF}, 0
        s_mov_b32 s32, {S_KVB}
        s_mov_b32 {S_KVB}, 0
        s_mov_b32 {S_KVO}, 0
        s_mov_b32 {S_KVS}, {128 * 2048}
        s_mov_b32 {S_KVM}, -1
        s_branch {swb}""")
    k.cold.append(cold)
    k(mm(O[1], ar(VF[1], 4), vr(P[1], 4), vr(O[1], 16)))
    k(mm(O[1], ar(VF[1] + 4, 4), vr(P[1] + 4, 4), vr(O[1], 16)))
    k(rowsum(1))
    stamp(k, "attn done", True)
    k(f"""v_and_b32 v9, 15, v0
    v_lshlrev_b32 v9, 8, v9
    s_mov_b32 s28, {cnt(1)}
    buffer_load_dword v10, v9, {S_WS}, s28 offen sc1""")
    fb, fbb = k.label("exact"), k.label("exacted")
    k(f"s_mov_b32 s3, {f32(2.0 ** 100)}")
    k(f"v_add_f32 v{L[0]}, v{L[0]}, v{L[0] + 1}")
    k(f"v_maximum3_f32 v6, abs(v{O[0]}), abs(v{O[0] + 1}), v{L[0]}")
    for i in range(2, 32, 2):
        k(f"v_maximum3_f32 v6, abs(v{O[0] + i}), abs(v{O[0] + i + 1}), v6")
    k(f"""v_add_f32 v{L[1]}, v{L[1]}, v{L[1] + 1}
    v_maximum3_f32 v6, v6, v6, v{L[1]}
    v_cmp_ngt_f32 vcc, s3, v6""")
    k(f"""s_cbranch_vccnz {fb}
    {fbb}:""")

    def exact():
        M, A = [157, 158], 159
        k(f"{fb}:")
        k("s_waitcnt vmcnt(0) lgkmcnt(0)")
        k("s_nop 15")
        zero(k, O[0], 40)
        k(f"""v_mov_b32 v{M[0]}, 0xff7fffff
        v_mov_b32 v{M[1]}, 0xff7fffff
        s_and_b32 s3, s32, 0xffffefff
        s_mov_b32 s67, 64""")
        top = k.label("exloop")
        k(f"{top}:")
        for i in range(4):
            k(f"buffer_load_dwordx4 {vr(NEG[0] + 4 * i, 4)}, v1, {S_WS}, s3 offen offset:{1024 * i} sc1")
        for q in range(2):
            s = S[q]
            k(mm(s, vr(NEG[0], 4), vr(Q[q], 4), "0"))
            k(mm(s, vr(NEG[0] + 4, 4), vr(Q[q] + 4, 4), vr(s, 16)))
            k(f"v_max3_f32 v6, v{s}, v{s + 1}, v{M[q]}")
            for i in range(2, 16, 2):
                k(f"v_max3_f32 v6, v6, v{s + i}, v{s + i + 1}")
            swap_sum(k, "v6", "v7", 32, "v_max_f32")
            k(f"""v_sub_f32 v{A}, v{M[q]}, v6
            v_exp_f32 v{A}, v{A}
            v_mov_b32 v{M[q]}, v6""")
            for i in range(16):
                k(f"v_sub_f32 v{s + i}, v{s + i}, v6")
            for i in range(16):
                k(f"v_exp_f32 v{s + i}, v{s + i}")
            for i in range(16):
                k(f"v_mul_f32 v{O[q] + i}, v{O[q] + i}, v{A}")
            for i in range(4):
                k(f"v_mul_f32 v{L[q] + i}, v{L[q] + i}, v{A}")
            for i in range(8):
                k(f"v_cvt_pk_bf16_f32 v{P[q] + i}, v{s + 2 * i}, v{s + 2 * i + 1}")
            for i in range(2):
                k(mm(O[q], vr(NEG[0] + 8 + 4 * i, 4), vr(P[q] + 4 * i, 4), vr(O[q], 16)))
            k(rowsum(q))
        k(f"""s_nop 15
        s_add_u32 s3, s3, 4096
        s_sub_u32 s67, s67, 1
        s_cmp_lg_u32 s67, 0
        s_cbranch_scc1 {top}""")
        for q in range(2):
            k(f"v_add_f32 v{L[q]}, v{L[q]}, v{L[q] + 1}")
        k(f"s_branch {fbb}")
    k.cold.append(exact)
    for q in range(2):
        k(f"v_rcp_f32 v4, v{L[q]}")
        for i in range(0, 16, 2):
            k(f"v_pk_mul_f32 {vr(O[q] + i, 2)}, {vr(O[q] + i, 2)}, v[4:5] op_sel_hi:[1,0]")
        for a in (0, 2):
            emit(k, pack_pair(S[q] + 2 * a, O[q] + 4 * a, O[q] + 4 * a + 4))
        for a in (0, 2):
            emit(k, swap_pair(S[q] + 2 * a, 32))
            k(f"buffer_store_dwordx4 {vr(S[q] + 2 * a, 4)}, {VO}, {S_WS}, {('s33', 's34')[q]} offen offset:{256 * a} sc1", tag="pub2")


def p3_wo(k):
    ACC = 96
    RA = [f"v{4 + j}" for j in range(4)] + [f"v{16 + j}" for j in range(4)]
    srd(k, 12, 0, 2048 * 2048)
    rowmajor_pair_addr(k, "v20", "v2")
    k(f"""s_lshl2_add_u32 s32, {S_RB3}, {S_WAVE}
    s_lshl_b32 s33, s32, 16
    s_lshl_b32 s3, {S_CB3}, 7
    s_add_u32 s34, s33, s3
    v_and_b32 v22, 15, v0
    v_lshlrev_b32 v22, 2, v22
    s_lshl_b32 s35, s32, 7
    s_add_u32 s35, s35, {WS_MEANX}""")
    for nb in range(4):
        k(f"buffer_load_dwordx4 {vr(32 + 4 * nb, 4)}, v20, {S_W}, s34 offen offset:{32 * nb}")
    for tb in range(2):
        k(f"buffer_load_dword v{24 + tb}, v22, {S_WS}, s35 offen offset:{64 * tb} sc1")
    k(f"""v_mov_b32 v29, 1
    v_mov_b32 v30, 0
    s_lshl_b32 s3, {S_RB}, 8
    s_add_u32 s3, s3, {cnt(2)}
    s_lshl_b32 s29, {S_RB3}, 8
    s_add_u32 s29, s29, {cnt(2)}""")
    k.wait("pub2")
    k("s_waitcnt lgkmcnt(0)")
    k("s_barrier")
    arrive(k, "v29", "v30", S_WS, "s3")()
    stamp(k, "o drained")
    check_or_spin(k, "v10", "v9", S_WS, "s28", 16, 16)
    k(f"""s_lshl_b32 s3, {S_WAVE}, 10
    s_add_u32 m0, s3, {LDS_WBAR}
    s_add_u32 s3, s3, {WS_WBAR}""")
    k(f"buffer_load_dwordx4 v1, {S_WS}, s3 offen sc1 lds", tag="wo7")
    for sl in range(4, 8):
        emit(k, kv_dma(m0_slot(sl), [f"v{196 + i}" for i in range(4)], "wo7"))
    narrow_raddr(k, RA, ["v2", "v3", "v21"])
    for j in range(4):
        k(f"v_add_u32 {RA[4 + j]}, 0x10000, {RA[j]}")
    k(f"""v_and_b32 v23, 1, v0
    v_lshlrev_b32 v23, 11, v23
    v_lshrrev_b32 v2, 4, v0
    v_lshl_add_u32 v23, v2, 4, v23
    v_add_u32 v23, {LDS_WBAR}, v23""")
    t16_pair_addr(k, "v21", "v2", 32768)
    k(f"""v_add_u32 v2, s33, v1
    v_add_u32 v3, 0x8000, v2
    s_mov_b32 {S_XSOFF}, {WS_O}
    s_lshl_b32 s3, {S_CB3}, 11
    s_add_u32 s33, s33, s3
    s_add_u32 s33, s33, {WS_HC}
    s_lshl_b32 s35, s32, 11
    s_lshl_b32 s3, {S_CB3}, 6
    s_add_u32 s35, s35, s3
    s_add_u32 s35, s35, {WS_VARP}""")
    for nb in range(4):
        emit(k, swap_pair(32 + 4 * nb))
        for i in range(4):
            k(f"""v_lshlrev_b32 v{48 + 8 * nb + 2 * i}, 16, v{32 + 4 * nb + i}
            v_and_b32 v{49 + 8 * nb + 2 * i}, {S_MSK}, v{32 + 4 * nb + i}""")
    k.wait("wo7")
    wg_wait(k, "v31", "v30", S_WS, "s29", 16)
    stamp(k, "s2 done", True)
    X0 = OPT.get("wox0", 5)
    emit(k, xres_loads(range(X0), ["v2", "v3"], S_XSOFF))
    NWF, LA = 10, 5
    frags = []
    g = 0
    for s in range(32):
        sl, t = divmod(s, 4)
        for nb in range(5):
            r = WFR + 4 * (g % NWF)
            if nb < 4:
                rd = [f"ds_read_b64_tr_b16 {ar(r + 2 * i, 2)}, {RA[4 * (sl // 4) + nb]} offset:{(sl % 4) * 16384 + t * 4096 + 512 * i}" for i in range(2)]
            else:
                rd = [f"ds_read_b128 {ar(r, 4)}, v23 offset:{64 * s}"]
            mf = []
            for tb in snake(g, 2):
                c = None
                if s == 0:
                    c = vr(48 + 8 * nb + 4 * tb, 4) if nb < 4 else "0"
                mf.append(mf16(vr(ACC + 4 * (tb * 5 + nb), 4), ar(r, 4), xres(2 * s + tb), c))
            frags.append(Frag(rd, mf, before=[("WAIT", ("X", s))] if nb == 0 else []))
            g += 1
    extra = {}
    for s_ in range(X0, 32):
        it = xres_loads([s_], ["v2", "v3"], S_XSOFF)
        for x, gp in zip(it, (2, 9, 10)):
            extra.setdefault(10 * (s_ - X0) + gp, []).append(x)
    prime(k, frags, LA)
    run_frags(k, frags, [], LA, extra)
    stamp(k, "wo done", True)
    k("s_barrier")
    a = lambda tb, nb: ACC + 4 * (tb * 5 + nb)
    for tb in range(2):
        k(f"""v_add_f32 v{24 + tb}, v{24 + tb}, v{a(tb, 4)}
        v_add_f32 v{24 + 2 * tb}, v{24 + tb}, v{a(tb, 4) + 1}""")
    for nb in range(4):
        for tb in range(2):
            for h in (0, 2):
                k(f"v_pk_add_f32 {vr(48 + 8 * nb + 4 * tb + h, 2)}, {vr(a(tb, nb) + h, 2)}, {vr(24 + 2 * tb, 2)} op_sel_hi:[1,0] neg_lo:[0,1] neg_hi:[0,1]")
        emit(k, pack_pair(32 + 4 * nb, 48 + 8 * nb, 52 + 8 * nb) + swap_pair(32 + 4 * nb))
        k(f"buffer_store_dwordx4 {vr(32 + 4 * nb, 4)}, v21, {S_WS}, s33 offen offset:{512 * nb} sc1", tag="pub3")
    for tb in range(2):
        k(f"v_pk_mul_f32 {vr(24 + 2 * tb, 2)}, {vr(48 + 4 * tb, 2)}, {vr(48 + 4 * tb, 2)}")
    for i in range(1, 8):
        for tb in range(2):
            r = vr(48 + 8 * (i // 2) + 4 * tb + 2 * (i % 2), 2)
            k(f"v_pk_fma_f32 {vr(24 + 2 * tb, 2)}, {r}, {r}, {vr(24 + 2 * tb, 2)}")
    for tb in range(2):
        k(f"v_add_f32 v{24 + 2 * tb}, v{24 + 2 * tb}, v{25 + 2 * tb}")
    for w in (16, 32):
        for tb in range(2):
            swap_sum(k, f"v{24 + 2 * tb}", f"v{25 + 2 * tb}", w)
    k("s_mov_b64 exec, 0xffff")
    for tb in range(2):
        k(f"buffer_store_dword v{24 + 2 * tb}, v22, {S_WS}, s35 offen offset:{1024 * tb} sc1", tag="pub3")
    k("s_mov_b64 exec, -1")
    return [f"v_accvgpr_write_b32 a{224 + 16 * tb + 4 * nb + r}, v{a(tb, nb) + r}" for tb in range(2) for nb in range(4) for r in range(4)]


class G:
    pass


def w_stage(p, st):
    out = []
    for m0off, lst in p.dma:
        out.append(f"s_add_u32 m0, {S_WSLOT}, {m0off}" if m0off else f"s_mov_b32 m0, {S_WSLOT}")
        for (vo, sr, imm) in lst:
            out.append((f"buffer_load_dwordx4 {vo}, {sr}, {S_WSOFF} offen offset:{imm} lds", (p.tag, "W", st)))
    out.append(f"s_add_u32 {S_WSOFF}, {S_WSOFF}, {p.wstep}")
    out.append(f"s_add_u32 {S_WSLOT}, {S_WSLOT}, {p.slot}\ns_cmp_eq_u32 {S_WSLOT}, {S_WEND}\ns_cselect_b32 {S_WSLOT}, {S_WV4K}, {S_WSLOT}")
    return out


def x_stage(p, st):
    out = []
    for t in range(p.SPS):
        for tb in range(p.TB):
            out.append((f"buffer_load_dwordx4 {p.xreg((st % p.U) * p.SPS + t, tb)}, {p.xoff[tb]}, {S_WS}, {S_XSOFF} offen offset:{1024 * t} sc1", (p.tag, "X", st, t)))
    out.append(f"s_add_u32 {S_XSOFF}, {S_XSOFF}, {1024 * p.SPS}")
    return out


def ring_init(k, p):
    k(f"""s_mov_b32 {S_WSLOT}, {S_WV4K}
    s_add_u32 {S_WEND}, {S_WV4K}, {p.S * p.slot}
    s_mov_b32 {S_WSOFF}, 0
    s_mov_b32 {S_XSOFF}, {p.xbase}
    s_mov_b32 {S_RD}, 0
    s_mov_b32 {S_SLOT}, {p.slot}""")


def stage_frags(p, st, first=False):
    F = p.SPS * p.NB
    out = []
    last = {}
    for f in range(F):
        last[p.raddr(f % p.NB)] = f
    for f in range(F):
        t, nb = divmod(f, p.NB)
        g = (st % p.U) * F + f
        r = p.wbase + 4 * (g % p.NWF)
        a = p.raddr(nb)
        rd = [f"ds_read_b64_tr_b16 {ar(r + 2 * i, 2)}, {a} offset:{p.roff(t, nb, i)}" for i in range(2)]
        mf = [mf16(p.acc(tb, nb), ar(r, 4), p.xreg((st % p.U) * p.SPS + t, tb), "0" if first and t == 0 else None) for tb in snake(g, p.TB)]
        pre = [("WAIT", (p.tag, "W", st)), "s_barrier"] if f == 0 else []
        post = [f"v_add_u32 {a}, {S_DELTA}, {a}"] if last[a] == f else []
        assert not post or f > p.LA
        bef = [("WAIT", (p.tag, "X", st, t))] if nb == 0 else []
        out.append(Frag(rd, mf, pre, post, bef))
    return out


def run_stage(k, p, st, flex, first=False, final=False, pos=None, end=None):
    NM = p.SPS * p.NB * p.TB
    flex = [f"s_add_u32 {S_RD}, {S_RD}, 1\ns_cmp_eq_u32 {S_RD}, {p.S}",
            f"s_cselect_b32 {S_DELTA}, {-(p.S - 1) * p.slot}, {S_SLOT}\ns_cselect_b32 {S_RD}, 0, {S_RD}"] + flex
    extra = {}
    spread(extra, flex, [n for n in range(NM) if (n % p.TB) in (pos or p.flexpos) and n < (end or p.flexend) * NM])
    run_frags(k, stage_frags(p, st, first), [] if final else stage_frags(p, st + 1), p.LA, extra)


def varp_loads(base, vaddr, soff, ntb):
    return [f"buffer_load_dword v{base + 4 * tb + i}, {vaddr}, {S_WS}, {soff} offen offset:{1024 * tb + 256 * i} sc1" for tb in range(ntb) for i in range(4)]


def varp_sum(b, tmp):
    out = [f"v_add_f32 v{b}, v{b}, v{b + 1}", f"v_add_f32 v{b + 2}, v{b + 2}, v{b + 3}", f"v_add_f32 v{b}, v{b}, v{b + 2}"]
    for w in (16, 32):
        out += [f"v_mov_b32 {tmp}, v{b}", f"v_permlane{w}_swap_b32 v{b}, {tmp}", f"v_add_f32 v{b}, v{b}, {tmp}"]
    return out + [f"v_mov_b32 {tmp}, {f32(1e-5)}", f"v_fmac_f32 {tmp}, {f32(1 / 1024)}, v{b}"]


W2_STAGE = [96, 112, 156, 172, 188, 204, 32, 48, 64, 80]
W2_DV = ["v8", "v9", "v10", "v11"]


def w2_pos(n):
    return ((n + 2) % 10) * 16384


def w2_load(n):
    NS = OPT.get("w2regs", 10)
    out = [f"s_mov_b32 {S_WSOFF}, {n * 128 * 2048}"]
    if 10 <= n < 10 + NS:
        for i in range(4):
            out.append(f"buffer_load_dwordx4 {ar(W2_STAGE[n - 10] + 4 * i, 4)}, {W2_DV[i]}, {S_W}, {S_WSOFF} offen offset:{1024 * i}")
    else:
        out[0] += f"\ns_add_u32 m0, {S_WV4K}, {w2_pos(n)}"
        for i in range(4):
            out.append((f"buffer_load_dwordx4 {W2_DV[i]}, {S_W}, {S_WSOFF} offen offset:{1024 * i} lds", ("f2", "W", n)))
    return out


def p4_ffn1(k, keep):
    p = G()
    p.tag = "f1"
    p.TB, p.NB, p.SPS, p.NST, p.U, p.S, p.DW = 4, 14, 2, 16, 3, 5, 3
    p.slot, p.NWF, p.LA = 32768, 7, 3
    p.wstep = 64 * 7168
    ACC = 32
    p.acc = lambda tb, nb: vr(ACC + 4 * (tb * 14 + nb), 4)
    p.xreg = lambda s, tb: ar(16 * s + 4 * tb, 4)
    p.wbase = 128
    p.xoff = ["v2", "v3", "v12", "v13"]
    p.xbase = WS_HC
    RA = ["v4", "v5", "v6", "v7"]
    p.raddr = lambda nb: RA[(nb // 2) % 4]
    p.roff = lambda t, nb, i: (nb % 2) * 16384 + (8 * t + i) * 1024 + (nb // 8) * 512
    DV = ["v8", "v9", "v10", "v11"]
    p.dma = [(0, [(DV[i], S_W, 1024 * i) for i in range(4)]), (16384, [(DV[i], S_A, 1024 * i) for i in range(4)])]
    p.flexpos, p.flexend = (2,), 0.85
    srd(k, 12, 4, 1024 * 7168)
    srd(k, 8, 5, 1024 * 7168)
    k(f"""s_mul_i32 s3, {S_WAVE}, {16 * 7168}
    s_mul_i32 s28, {S_CB4}, 224
    s_and_b32 s28, s28, 0xffffffc0
    s_add_u32 s3, s3, s28
    v_bfe_u32 v14, v0, 3, 2
    v_and_b32 v15, 2, v14
    v_lshlrev_b32 v15, 1, v15
    v_and_b32 v16, 7, v0
    v_xor_b32 v15, v15, v16
    v_mul_u32_u24 v14, 7168, v14
    v_add_u32 v14, s3, v14
    v_lshrrev_b32 v16, 5, v0
    v_lshl_add_u32 v14, v16, 7, v14
    v_xor_b32 v16, 2, v15
    v_lshl_add_u32 v15, v15, 4, v14
    v_lshl_add_u32 v16, v16, 4, v14""")
    for i in range(4):
        k(f"v_add_u32 {DV[i]}, {i * 4 * 7168 - i * 1024}, v{15 + i // 2}")
    ring_init(k, p)
    emit(k, w_stage(p, 0))
    emit(k, keep)
    for i in range(4):
        k(f"v_accvgpr_write_b32 a{220 + i}, v{196 + i}")
    k(f"""s_lshr_b32 s3, {S_RB3}, 1
    s_lshl_b32 s3, s3, 8
    s_add_u32 s3, s3, {cnt(3)}
    s_lshl_b32 s29, {S_RB4}, 8
    s_add_u32 s29, s29, {cnt(3)}""")
    k.wait("pub3")
    k("s_barrier")
    arrive(k, "v29", "v30", S_WS, "s3")()
    stamp(k, "h drained")
    PRE = OPT.get("f1pre", 2)
    for st in range(1, PRE):
        emit(k, w_stage(p, st))
    k(f"""s_lshl2_add_u32 s32, {S_RB4}, {S_WAVE}
    s_lshl_b32 s32, s32, 2
    s_lshl_b32 s3, s32, 15
    v_add_u32 v2, s3, v1
    v_add_u32 v3, 0x8000, v2
    v_add_u32 v12, 0x10000, v2
    v_add_u32 v13, 0x18000, v2""")
    lane_terms(k, "v14", "v15", "v16")
    k(f"""v_lshlrev_b32 v15, 11, v15
    v_lshl_add_u32 v15, v14, 7, v15
    v_and_b32 v14, 3, v0
    v_lshl_add_u32 v15, v14, 3, v15
    s_and_b32 s28, {S_CB4}, 1""")
    for j in range(4):
        k(f"""s_add_u32 s3, s28, {j}
        s_and_b32 s33, s3, 3
        s_lshr_b32 s3, s3, 2
        s_lshl_b32 s3, s3, 9
        v_xor_b32 v14, s33, v16
        v_lshl_add_u32 {RA[j]}, v14, 5, v15
        v_add_u32 {RA[j]}, s3, {RA[j]}""")
    k(f"""s_mul_i32 s34, s32, {3584 * 32}
    s_mul_i32 s3, {S_CB4}, {7 * 512}
    s_add_u32 s34, s34, s3
    s_add_u32 s34, s34, {WS_ACT}
    s_add_u32 s35, s34, {2 * 3584 * 32}
    s_lshl_b32 s30, s32, 10
    s_add_u32 s30, s30, {WS_VARP}""")
    t16_pair_addr(k, "v15", "v14", 3584 * 32)
    k("v_lshlrev_b32 v14, 2, v0")
    k.wait((p.tag, "W", 0))
    wg_wait(k, "v31", "v30", S_WS, "s29", 32)
    stamp(k, "s3 done", True)
    emit(k, x_stage(p, 0))
    fr = stage_frags(p, 0)
    fr[0].pre = []
    prime(k, fr, p.LA)
    flex = x_stage(p, 1)
    for st in range(PRE, p.DW):
        flex += w_stage(p, st)
    flex += x_stage(p, 2) + w_stage(p, p.DW)
    run_stage(k, p, 0, flex, first=True, pos=(2, 3), end=1.0)

    def body(it):
        for u in range(p.U):
            st = 1 + it * p.U + u
            run_stage(k, p, st, x_stage(p, st + 2) + w_stage(p, st + p.DW))
    k.loop(4, body, S_CNT)
    NS = OPT.get("w2regs", 10)
    regs = list(range(10, 10 + NS))
    sw = [f"v_accvgpr_read_b32 {W2_DV[i]}, a{220 + i}" for i in range(4)]
    sw.append(f"s_mov_b32 s12, s{S_KARG + 12}\ns_mov_b32 s13, s{S_KARG + 13}\ns_mov_b32 s14, {3584 * 2048}")
    ld = lambda l: [it for n in l for it in w2_load(n)]
    cst = []
    for tb in range(4):
        cst += varp_sum(16 + 4 * tb, "v14") + ["v_rsq_f32 v14, v14", f"v_mul_f32 v{16 + 2 * tb}, {f32(-LOG2E)}, v14"]
    run_stage(k, p, 13, x_stage(p, 15) + sw + varp_loads(16, "v14", "s30", 4) + ld([0, 1] + regs[:1]), pos=(2, 3), end=1.0)
    run_stage(k, p, 14, ld([2, 3] + regs[1:4]), pos=(2, 3), end=1.0)
    extra_c = ld([4, 5] + regs[4:7])
    mix = []
    for i in range(max(len(extra_c), len(cst))):
        mix += extra_c[i:i + 1] + cst[2 * i:2 * i + 2]
    run_stage(k, p, 15, mix, final=True, pos=(0, 1, 2, 3), end=1.0)
    stamp(k, "ffn1 done", True)
    k("s_barrier")
    a = lambda tb, nb: ACC + 4 * (tb * 14 + nb)
    T = 24
    pre = [w2_load(n) for n in [6, 7, 8, 9] + regs[7:]]
    for j in range(7):
        for tp in range(2):
            for tb in (2 * tp, 2 * tp + 1):
                g, u, t = a(tb, 2 * j), a(tb, 2 * j + 1), T + 4 * (tb % 2)
                for h in (0, 2):
                    k(f"v_pk_mul_f32 {vr(t + h, 2)}, {vr(g + h, 2)}, {vr(16 + 2 * tb, 2)} op_sel_hi:[1,0]")
                for h in (0, 2):
                    k(f"v_pk_mul_f32 {vr(g + h, 2)}, {vr(g + h, 2)}, {vr(u + h, 2)}")
            for i in range(8):
                k(f"v_exp_f32 v{T + i}, v{T + i}")
            for i in range(0, 8, 2):
                k(f"v_pk_add_f32 {vr(T + i, 2)}, {vr(T + i, 2)}, 1.0 op_sel_hi:[1,0]")
            for i in range(8):
                k(f"v_rcp_f32 v{T + i}, v{T + i}")
            for tb in (2 * tp, 2 * tp + 1):
                g, t = a(tb, 2 * j), T + 4 * (tb % 2)
                for h in (0, 2):
                    k(f"v_pk_mul_f32 {vr(g + h, 2)}, {vr(g + h, 2)}, {vr(t + h, 2)}")
            d = a(2 * tp, 2 * j + 1)
            emit(k, pack_pair(d, a(2 * tp, 2 * j), a(2 * tp + 1, 2 * j)))
            if pre and OPT.get("w2epi", 0) and tp == 0:
                emit(k, pre.pop(0))
            emit(k, swap_pair(d))
            k(f"buffer_store_dwordx4 {vr(d, 4)}, v15, {S_WS}, {('s34', 's35')[tp]} offen offset:{512 * j} sc1", tag="pub4")
    stamp(k, "act stored")
    return pre


def p5_ffn2(k, pre):
    ACC, XR = 96, 128
    NS = OPT.get("w2regs", 10)
    RA = [[f"v{4 + j}" for j in range(4)], [f"v{16 + j}" for j in range(4)], [f"v{32 + j}" for j in range(4)]]
    WA = ["v36", "v37", "v38"]
    E = OPT.get("w2drain", 2)
    for x in pre[:E]:
        emit(k, x)
    k(f"""v_mov_b32 v29, 1
    v_mov_b32 v30, 0
    s_lshl_b32 s3, {S_RB4}, 8
    s_add_u32 s3, s3, {cnt(4)}
    s_lshr_b32 s29, {S_RB3}, 1
    s_lshl_b32 s29, s29, 8
    s_add_u32 s29, s29, {cnt(4)}""")
    narrow_raddr(k, RA[0], ["v12", "v13", "v14"])
    srd(k, 8, 7, 2048 * 2048)
    k(f"""s_lshl2_add_u32 s32, {S_RB3}, {S_WAVE}
    s_lshl_b32 s32, s32, 1
    s_mul_i32 s28, s32, {3584 * 32}
    v_add_u32 v2, s28, v1
    v_add_u32 v3, {3584 * 32}, v2
    s_lshl_b32 s34, s32, 15
    s_lshl_b32 s28, {S_CB3}, 7
    s_add_u32 s34, s34, s28
    s_lshl_b32 s30, s32, 10
    s_add_u32 s30, s30, {WS_VARP}
    s_mov_b32 {S_XSOFF}, {WS_ACT}""")
    k.wait("pub4")
    k("s_barrier")
    arrive(k, "v29", "v30", S_WS, "s3")()
    stamp(k, "act drained")
    for x in pre[E:]:
        emit(k, x)
    for j in range(4):
        k(f"""v_add_u32 {RA[1][j]}, 0x10000, {RA[0][j]}
        v_add_u32 {RA[2][j]}, 0x20000, {RA[0][j]}""")
    k(f"""v_add_u32 {WA[0]}, {S_WV4K}, v1
    v_add_u32 {WA[1]}, 0x10000, {WA[0]}
    v_add_u32 {WA[2]}, 0x20000, {WA[0]}""")
    rowmajor_pair_addr(k, "v20", "v14")
    k("v_lshlrev_b32 v14, 2, v0")
    for i in range(32):
        k(f"v_accvgpr_read_b32 v{48 + i}, a{224 + i}")
    k.wait(("f2", "W", 0), ("f2", "W", 1))
    wg_wait(k, "v31", "v30", S_WS, "s29", 32)
    stamp(k, "s4 done", True)
    xreg = lambda s, tb: vr(XR + 8 * (s % 16) + 4 * tb, 4)

    def xl(st):
        if st >= 28:
            return []
        out = [(f"buffer_load_dwordx4 {xreg(4 * st + t, tb)}, v{2 + tb}, {S_WS}, {S_XSOFF} offen offset:{1024 * t} sc1", ("f2", "X", st, t))
               for t in range(4) for tb in range(2)]
        return out + [f"s_add_u32 {S_XSOFF}, {S_XSOFF}, 4096"]
    XD = OPT.get("f2xd", 2)
    BS = OPT.get("f2bar", 2)
    for st in range(XD):
        emit(k, xl(st))
    NWF, LA = 8, 5
    frags, extra = [], {}
    g = 0
    for st in range(28):
        for t in range(4):
            for nb in range(4):
                r = 224 + 4 * (g % NWF)
                pos = w2_pos(st) + t * 4096
                rd = [f"ds_read_b64_tr_b16 {ar(r + 2 * i, 2)}, {RA[pos >> 16][nb]} offset:{(pos & 0xffff) + 512 * i}" for i in range(2)]
                mf = [mf16(vr(ACC + 4 * (tb * 4 + nb), 4), ar(r, 4), xreg(4 * st + t, tb), "0" if st == 0 and t == 0 else None) for tb in snake(g, 2)]
                pre_ = []
                if t == 0 and nb == 0 and st and st % BS == 0:
                    pre_ = [("WAIT",) + tuple(("f2", "W", st + i) for i in range(BS)), "s_barrier"]
                frags.append(Frag(rd, mf, pre_, before=[("WAIT", ("f2", "X", st, t))] if nb == 0 else []))
                g += 1
        items = xl(st + XD)
        n = st + 9 - BS
        if 10 <= n < 10 + NS:
            pos = w2_pos(n)
            w = [(f"ds_write_b128 {WA[pos >> 16]}, {ar(W2_STAGE[n - 10] + 4 * i, 4)} offset:{(pos & 0xffff) + 1024 * i}", ("f2", "W", n)) for i in range(4)]
        elif 10 + NS <= n < 28:
            w = w2_load(n)
        else:
            w = []
        its = []
        for i in range(max((len(items) + 1) // 2, len(w))):
            its += items[2 * i:2 * i + 2] + w[i:i + 1]
        if st == 22:
            its += varp_loads(80, "v14", "s30", 2)
        if st in (26, 27):
            tb = st - 26
            its += varp_sum(80 + 4 * tb, f"v{24 + 2 * tb}") + [f"v_rcp_f32 v{24 + 2 * tb}, v{24 + 2 * tb}"]
        if its:
            spread(extra, its, range(32 * st, 32 * st + 32, 2 if len(its) <= 16 else 1))
    prime(k, frags, LA)
    run_frags(k, frags, [], LA, extra)
    stamp(k, "ffn2 done", True)
    a = lambda tb, nb: ACC + 4 * (tb * 4 + nb)
    for nb in range(4):
        for tb in range(2):
            for h in (0, 2):
                k(f"v_pk_fma_f32 {vr(a(tb, nb) + h, 2)}, {vr(a(tb, nb) + h, 2)}, {vr(24 + 2 * tb, 2)}, {vr(48 + 16 * tb + 4 * nb + h, 2)} op_sel_hi:[1,0,1]")
        emit(k, pack_pair(32 + 4 * nb, a(0, nb), a(1, nb)) + swap_pair(32 + 4 * nb))
        k(f"buffer_store_dwordx4 {vr(32 + 4 * nb, 4)}, v20, {S_A}, s34 offen offset:{32 * nb}")


def p_exit(k):
    if OPT["stamps"]:
        k("s_waitcnt vmcnt(0)")
        stamp(k, "end")
        k(f"""s_lshl_b32 s3, s66, 7
        s_add_u32 s3, s3, {WS_STAMP}
        v_mov_b32 v1, 0""")
        for i in range(len(k.stamps)):
            k(f"""v_mov_b32 v2, s{S_STAMP + i}
            buffer_store_dword v2, v1, {S_WS}, s3 offen offset:{4 * i}""")
    k(f"""{k.end}:
    s_endpgm""")
    for c in k.cold:
        k("s_waitcnt vmcnt(0) lgkmcnt(0)")
        c()
    k("L_codeend:")
    k("s_endpgm")


def build():
    k = Kernel(NAME + "_kernel")
    k.label = lambda base, n=[0]: (n.__setitem__(0, n[0] + 1), f"L_{base}_{n[0]}")[1]
    k.cold, k.stamps = [], []
    p_entry(k)
    p0_ln(k)
    p1_qkv(k)
    p2_attn(k)
    keep = p3_wo(k)
    pre = p4_ffn1(k, keep)
    p5_ffn2(k, pre)
    p_exit(k)
    hdr = open(f"cdna_kernels/{NAME}.s.ref").read().split("; Override launch")[0]
    out = hdr
    if OPT["stamps"]:
        out += "; stamps: " + ",".join(k.stamps) + "\n"
    out += "; @launch grid=(256,1,1) block=(256,1,1) lds=163840\n"
    out += '.amdgcn_target "amdgcn-amd-amdhsa--gfx950"\n.text\n'
    out += k.text()
    out += '.section .rodata,"a"\n.p2align 6\n' + descriptor(k.name, 512, 256)
    return out


if __name__ == "__main__":
    args = sys.argv[1:]
    path = f"cdna_kernels/{NAME}.s"
    for a in args:
        if a == "--stamps":
            OPT["stamps"] = True
        elif "=" in a:
            kk, v = a.split("=")
            OPT[kk] = int(v)
        else:
            path = a
    open(path, "w").write(build())
```
